```python
import torch

def _softmax(x, axis=-1):
    return torch.softmax(x, dim=axis)
def _gelu(x):
    return torch.nn.functional.gelu(x, approximate="tanh")
def _silu(x):
    return torch.nn.functional.silu(x)
def _sigmoid(x):
    return torch.sigmoid(x)
def _layernorm(x, axis=-1, eps=1e-5):
    m = x.mean(dim=axis, keepdim=True)
    v = x.var(dim=axis, keepdim=True, unbiased=False)
    return (x - m) / torch.sqrt(v + eps)
def _scatter_add(tgt, idx, src, axis=0):
    return tgt.clone().index_add_(axis, idx, src)
def _segment_sum(src, seg, n):
    out = torch.zeros((n,) + src.shape[1:], dtype=src.dtype)
    return out.index_add_(0, seg, src)
def _pad(x, pw):
    flat = tuple(v for pair in reversed(pw) for v in pair)
    return torch.nn.functional.pad(x, flat)

kernel_name = 'recurrent_scan__spectral_gfnet__glu_gated_glu__prompt'

def setup_inputs():

    _w = (lambda a: (lambda t: t.to(torch.bfloat16) if t.is_floating_point() else t)(torch.as_tensor(a)))
    def _A_setup():
        B, S, D = 1, 2048, 512
        Df = D // 2 + 1
        return {
            "x": _w((lambda *s: torch.randn(*s, dtype=torch.bfloat16) * 0.05)(B, S, D)),
            "w_r": _w((lambda *s: torch.randn(*s, dtype=torch.bfloat16) * 0.05)(S, Df) * 0.02),
            "w_i": _w((lambda *s: torch.randn(*s, dtype=torch.bfloat16) * 0.05)(S, Df) * 0.02),
        }
    _A_in = _A_setup()

    def _B_setup():
        B, S, D, F = 1, 2048, 512, 1792
        return {
            "x": _w((lambda *s: torch.randn(*s, dtype=torch.bfloat16) * 0.05)(B, S, D)),
            "w_gate": _w((lambda *s: torch.randn(*s, dtype=torch.bfloat16) * 1.6)(D, F)),
            "w_up": _w((lambda *s: torch.randn(*s, dtype=torch.bfloat16) * 0.1)(D, F)),
            "w_down": _w((lambda *s: torch.randn(*s, dtype=torch.bfloat16) * 0.1)(F, D)),
        }
    _B_in = _B_setup()

    return {
        "A_x": _A_in["x"],
        "A_w_r": _A_in["w_r"],
        "A_w_i": _A_in["w_i"],
        "B_x": _B_in["x"],
        "B_w_gate": _B_in["w_gate"],
        "B_w_up": _B_in["w_up"],
        "B_w_down": _B_in["w_down"],
    }

def reference(A_x, A_w_r, A_w_i, B_x, B_w_gate, B_w_up, B_w_down):
    def _A_ref(x, w_r, w_i):
        B, S, D = x.shape
        X = (lambda x, axes=(-2,-1): torch.fft.rfft2(x.float(), dim=axes))(x, axes=(-2, -1))
        W = w_r + 1j * w_i
        X = X * W
        y = (lambda x, s, axes=(-2,-1): torch.fft.irfft2(x, s=s, dim=axes).to(torch.bfloat16))(X, (S, D), axes=(-2, -1))
        return y

    def _B_ref(x, w_gate, w_up, w_down):
        g = torch.einsum("bsd,df->bsf", x, w_gate)
        u = torch.einsum("bsd,df->bsf", x, w_up)
        h = _sigmoid(g) * u
        return torch.einsum("bsf,fd->bsd", h, w_down)

    x = A_x
    xn = _layernorm(x, axis=-1)
    s = _A_ref(xn, A_w_r, A_w_i)
    g = _silu(_B_ref(xn, B_w_gate, B_w_up, B_w_down))
    return x + s * g
```

```python
import re


class R:
    cnt = 0

    def __init__(s, n=1, cls='v', name='', align=None, pin=None):
        s.n = n
        s.cls = cls
        s.name = name
        R.cnt += 1
        s.id = R.cnt
        if align is None:
            align = 1 if n == 1 else (2 if n == 2 else 4)
        s.align = align
        s.phys = None
        s.pcls = None
        if pin is not None:
            s.phys = pin
            s.pcls = cls
        s.pinned = pin is not None

    def __getitem__(s, k):
        if isinstance(k, slice):
            a = k.start or 0
            b = k.stop if k.stop is not None else s.n
            assert 0 <= a < b <= s.n, (s.name, k)
            return Sub(s, a, b - a)
        assert 0 <= k < s.n, (s.name, k)
        return Sub(s, k, 1)

    def sub(s):
        return Sub(s, 0, s.n)


class Sub:
    def __init__(s, r, off, n, neg=False):
        s.r = r
        s.off = off
        s.n = n
        s.neg = neg

    def __neg__(s):
        return Sub(s.r, s.off, s.n, not s.neg)

    def __getitem__(s, k):
        if isinstance(k, slice):
            a = k.start or 0
            b = k.stop if k.stop is not None else s.n
            return Sub(s.r, s.off + a, b - a)
        return Sub(s.r, s.off + k, 1)

    def fmt(s):
        r = s.r
        assert r.phys is not None, ('unallocated', r.name)
        p = r.phys + s.off
        t = f'{r.pcls}{p}' if s.n == 1 else f'{r.pcls}[{p}:{p + s.n - 1}]'
        return ('-' if s.neg else '') + t

    def regs(s):
        r = s.r
        return [(r.pcls, r.phys + s.off + i) for i in range(s.n)]

    def vregs(s):
        return [(s.r.id, s.off + i) for i in range(s.n)]


def neg(x):
    if isinstance(x, R):
        x = x.sub()
    return -x


SPECIAL = {'vcc': [('s', 106), ('s', 107)], 'exec': [('s', 126), ('s', 127)], 'm0': [('s', 124)],
           'vcc_lo': [('s', 106)], 'vcc_hi': [('s', 107)], 'exec_lo': [('s', 126)], 'exec_hi': [('s', 127)]}
TRANS = ('v_exp_f32', 'v_log_f32', 'v_rcp_f32', 'v_rsq_f32', 'v_sqrt_f32', 'v_sin_f32', 'v_cos_f32')


class I:
    def __init__(s, op, *ops, mods='', extra_use=(), extra_def=(), note=''):
        s.op = op
        s.ops = [o.sub() if isinstance(o, R) else o for o in ops]
        s.mods = mods
        s.note = note
        s.extra_use = [o.sub() if isinstance(o, R) else o for o in extra_use]
        s.extra_def = [o.sub() if isinstance(o, R) else o for o in extra_def]
        s.classify()

    def classify(s):
        op = s.op
        ops = s.ops
        k = None
        d, u = [], []
        if op.startswith('v_mfma'):
            k = 'mfma'
            s.passes = 8 if '32x32' in op else 4
            d, u = ops[:1], ops[1:]
        elif op.startswith('buffer_load') and 'lds' in s.mods.split():
            k = 'dma'
            u = ops + ['m0']
        elif op.startswith('buffer_load') or op.startswith('global_load'):
            k = 'vld'
            d, u = ops[:1], ops[1:]
        elif op.startswith('buffer_store') or op.startswith('global_store'):
            k = 'vst'
            u = ops
        elif op.startswith('ds_read') or op.startswith('ds_bpermute'):
            k = 'dsr'
            d, u = ops[:1], ops[1:]
        elif op.startswith('ds_write'):
            k = 'dsw'
            u = ops
        elif op.startswith('s_load') or op in ('s_memtime', 's_memrealtime'):
            k = 'smem'
            d, u = ops[:1], ops[1:]
        elif op in ('s_waitcnt', 's_nop', 's_barrier', 's_sleep', 's_setprio', 's_endpgm', 's_branch'):
            k = 'misc'
        elif op.startswith('s_cbranch'):
            k = 'misc'
            if 'vcc' in op:
                u = ['vcc']
        elif op.startswith('s_cmp'):
            k = 'salu'
            u = ops
        elif op.startswith('s_'):
            k = 'salu'
            d, u = ops[:1], ops[1:]
        elif op.startswith('v_permlane'):
            k = 'valu'
            d, u = ops[:2], ops[:2]
        elif op in ('v_fmac_f32', 'v_writelane_b32') or '_dpp' in op:
            k = 'valu'
            d, u = ops[:1], ops
        elif op.startswith('v_'):
            k = 'valu'
            d, u = ops[:1], ops[1:]
        elif op in ('label', 'wait', 'raw', 'comment'):
            k = 'pseudo'
        else:
            raise ValueError(op)
        s.kind = k
        s.defs = [o for o in d if isinstance(o, Sub) or o in SPECIAL] + list(s.extra_def)
        s.uses = [o for o in u if isinstance(o, Sub) or (isinstance(o, str) and o in SPECIAL)] + list(s.extra_use)
        s.trans = op in TRANS

    def cost(s):
        if s.kind == 'pseudo':
            return 1 if s.op == 'wait' else 0
        if s.trans:
            return 2
        if s.kind == 'mfma':
            return 2
        return 1

    def fmt(s):
        if s.op == 'label':
            return f'{s.ops[0]}:'
        if s.op == 'raw':
            return s.ops[0]
        if s.op == 'comment':
            return f'; {s.ops[0]}'

        def f(o):
            if isinstance(o, Sub):
                return o.fmt()
            if isinstance(o, float):
                return repr(o)
            if isinstance(o, int) and not (-16 <= o <= 64):
                return hex(o & 0xffffffff)
            return str(o)
        t = '  ' + s.op
        if s.ops:
            t += ' ' + ', '.join(f(o) for o in s.ops)
        if s.mods:
            t += ' ' + s.mods
        if s.note:
            t += '  ; ' + s.note
        return t


def pregs(lst):
    out = []
    for o in lst:
        if isinstance(o, Sub):
            out += o.regs()
        else:
            out += SPECIAL[o]
    return out


def WAIT(*insts):
    w = I('wait')
    w.targets = list(insts)
    return w


class Item:
    def __init__(s, insts, t0=0, t1=10**9):
        s.insts = insts if isinstance(insts, list) else [insts]
        s.t0 = t0
        s.t1 = t1
        s.cost = sum(i.cost() for i in s.insts)


class Queue:
    def __init__(s, name=''):
        s.items = []
        s.name = name

    def add(s, insts, t0=0, t1=10**9):
        s.items.append(Item(insts, t0, t1))

    def sort(s):
        s.items.sort(key=lambda it: it.t0)

    def addeach(s, insts, t0=0, t1=10**9):
        for i in insts:
            s.add(i, t0, t1)


def weave(main, queues, cap=6, base=0):
    out = []
    debt = 0
    for bi, beat in enumerate(main):
        i = bi + base
        out += beat
        c = 0
        for x in beat:
            if x.kind == 'mfma':
                c += cap if x.passes == 8 else (cap - 2) // 2
            else:
                c -= x.cost()
        c -= debt
        for q in queues:
            last = -1
            for n, it in enumerate(q.items):
                if it.t1 <= i:
                    last = n
            for it in q.items[:last + 1]:
                assert it.t0 <= i, ('forced before t0', q.name, i, it.t0, it.t1)
                out += it.insts
                c -= it.cost
            q.items = q.items[last + 1:]
        progress = True
        while c > 0 and progress:
            progress = False
            for q in queues:
                if q.items and q.items[0].t0 <= i and (q.items[0].cost <= c + 1):
                    it = q.items.pop(0)
                    out += it.insts
                    c -= it.cost
                    progress = True
                    break
        debt = max(0, min(-c, 2)) if c < 0 else 0
    return out


def drain(queues):
    out = []
    for q in queues:
        for it in q.items:
            out += it.insts
        q.items = []
    return out


def check_def_before_use(prog, predefined=()):
    seen = set(predefined)
    bad = 0
    for n, i in enumerate(prog):
        for o in i.uses:
            if isinstance(o, Sub) and not o.r.pinned:
                for v in o.vregs():
                    if v not in seen and o not in i.defs:
                        print('USE BEFORE DEF', n, i.op, o.r.name, v)
                        bad += 1
                        break
        for o in i.defs:
            if isinstance(o, Sub):
                seen.update(o.vregs())
    assert bad == 0
    return seen


def allocate(prog, nv=256, na=256, ns=100, s_reserved=(), v_reserved=(), verbose=False):
    first, last, regs = {}, {}, {}
    for n, i in enumerate(prog):
        for o in i.defs + i.uses:
            if isinstance(o, Sub):
                r = o.r
                regs[r.id] = r
                first.setdefault(r.id, n)
                last[r.id] = n
    busy = {'v': [-1] * nv, 'a': [-1] * na, 's': [-1] * ns}
    for p in s_reserved:
        busy['s'][p] = 10**9
    for p in v_reserved:
        busy['v'][p] = 10**9
    fixed = {'v': [], 'a': [], 's': []}
    for r in regs.values():
        if r.phys is not None:
            f0 = 0
            fixed[r.pcls].append((r.phys, r.n, f0, last[r.id] if not r.pinned else 10**9))
            for k in range(r.n):
                busy[r.pcls][r.phys + k] = max(busy[r.pcls][r.phys + k], last[r.id] if not r.pinned else 10**9)
    hi = {'v': 0, 'a': 0, 's': 0}
    for r in sorted((r for r in regs.values() if r.phys is None), key=lambda r: first[r.id]):
        order = {'v': 'v', 'a': 'a', 's': 's', 'any': 'av', 'vany': 'va'}[r.cls]
        done = False
        for c in order:
            b = busy[c]
            for p in range(0, len(b) - r.n + 1, r.align):
                if all(b[p + k] < first[r.id] for k in range(r.n)):
                    r.phys, r.pcls = p, c
                    for k in range(r.n):
                        b[p + k] = last[r.id]
                    hi[c] = max(hi[c], p + r.n)
                    done = True
                    break
            if done:
                break
        if not done:
            live = [(x.name, x.n, x.pcls) for x in regs.values() if x.phys is not None and first[x.id] <= first[r.id] <= last[x.id]]
            tot = {}
            for nm, n, c in live:
                key = (re.sub(r'\d+', '', nm), c)
                tot[key] = tot.get(key, 0) + n
            raise RuntimeError(f'out of registers for {r.name} ({r.cls}x{r.n}) at {first[r.id]}: {sorted(tot.items())}')
    if verbose:
        print('high water', hi)
    return hi


def insert_waits(prog):
    out = []
    vm = []
    lg = []
    pend = {}

    def need(insts):
        nv, nl = None, None
        for t in insts:
            if t in vm:
                c = len(vm) - 1 - vm.index(t)
                nv = c if nv is None else min(nv, c)
            if t in lg:
                if any(x.kind == 'smem' for x in lg):
                    c = 0
                else:
                    c = len(lg) - 1 - lg.index(t)
                nl = c if nl is None else min(nl, c)
        if nv is None and nl is None:
            return
        parts = []
        if nv is not None:
            nv = min(nv, 63)
            parts.append(f'vmcnt({nv})')
            del vm[:len(vm) - nv]
        if nl is not None:
            nl = min(nl, 15)
            parts.append(f'lgkmcnt({nl})')
            del lg[:len(lg) - nl]
        out.append(I('s_waitcnt', mods=' '.join(parts)))
        for k in [k for k, t in pend.items() if t not in vm and t not in lg]:
            del pend[k]

    seen = set()
    for i in prog:
        seen.add(id(i))
        if i.op == 'wait':
            for t in i.targets:
                assert id(t) in seen, ('wait for an instruction that was not issued yet', t.op, t.mods)
            need(i.targets)
            continue
        if i.op == 's_waitcnt':
            m = re.search(r'vmcnt\((\d+)\)', i.mods)
            if m:
                del vm[:max(0, len(vm) - int(m.group(1)))]
            m = re.search(r'lgkmcnt\((\d+)\)', i.mods)
            if m and (int(m.group(1)) == 0 or not any(x.kind == 'smem' for x in lg)):
                del lg[:max(0, len(lg) - int(m.group(1)))]
            for k in [k for k, t in pend.items() if t not in vm and t not in lg]:
                del pend[k]
            out.append(i)
            continue
        t = set()
        for p in pregs(i.uses) + pregs(i.defs):
            if p in pend:
                t.add(pend[p])
        if t:
            need(list(t))
        out.append(i)
        if i.kind in ('dma', 'vld', 'vst'):
            vm.append(i)
            assert len(vm) < 200
        if i.kind in ('dsr', 'dsw', 'smem'):
            lg.append(i)
        if i.kind in ('vld', 'dsr', 'smem'):
            for p in pregs(i.defs):
                pend[p] = i
    return out


def pad_hazards(prog):
    out = []
    hist = []
    pos = 0
    nops = 0

    def states(i):
        if i.op == 's_nop':
            return int(i.ops[0]) + 1
        if i.kind == 'pseudo':
            return 0
        return 1

    for i in prog:
        if i.kind == 'pseudo':
            out.append(i)
            continue
        D = set(pregs(i.defs))
        U = set(pregs(i.uses))
        need = 0
        isvalu = i.kind == 'valu'
        for (p, ppos, pD, pU) in hist:
            dist = pos - ppos - 1
            req = 0
            if p.kind == 'valu':
                vD = {x for x in pD if x[0] != 's'}
                sD = {x for x in pD if x[0] == 's'}
                if i.kind == 'mfma' and vD & U:
                    req = max(req, 2)
                if isvalu and p.trans and vD & U:
                    req = max(req, 1)
                if p.trans and i.kind in ('vst', 'dsw', 'vld', 'dsr', 'dma') and vD & U:
                    req = max(req, 1)
                if isvalu and vD & U and ('_dpp' in i.op or i.op.startswith('v_permlane')):
                    req = max(req, 2)
                if i.op.startswith('v_read') and vD & U:
                    req = max(req, 1)
                if sD & U:
                    if isvalu:
                        req = max(req, 4 if i.op in ('v_readlane_b32', 'v_writelane_b32') else 2)
                    if i.kind in ('vld', 'vst', 'dma'):
                        req = max(req, 5)
                    if i.kind in ('salu', 'misc', 'smem'):
                        req = max(req, 1)
            if p.kind == 'salu' and ('s', 124) in pD and i.kind == 'dma':
                req = max(req, 1)
            if p.kind == 'salu' and (('s', 126) in pD or ('s', 127) in pD) and (i.kind == 'mfma' or '_dpp' in i.op):
                req = max(req, 2)
            if p.kind in ('vst', 'dsw') and ('x4' in p.op or 'x3' in p.op or 'b128' in p.op):
                data = set(pregs([p.ops[0] if p.kind == 'vst' else p.ops[1]]))
                if data & D:
                    req = max(req, 2)
            if p.kind == 'mfma':
                big = 12 if p.passes == 8 else 8
                if i.kind == 'mfma':
                    C = set(pregs([i.ops[3]])) if isinstance(i.ops[3], Sub) else set()
                    AB = set(pregs(i.ops[1:3]))
                    if pD & AB:
                        req = max(req, big)
                    if pD & C:
                        if not (C == pD and p.op == i.op):
                            req = max(req, big - 2)
                    elif pD & D:
                        req = max(req, big - 2)
                elif (pD & (U | D)):
                    req = max(req, big)
                if isvalu or i.kind in ('vld', 'dsr'):
                    pC = set(pregs([p.ops[3]])) if isinstance(p.ops[3], Sub) else set()
                    if pC & D:
                        req = max(req, 7 if p.passes == 8 else 3)
            if req - dist > need:
                need = req - dist
        if need > 0:
            nops += need
            n = need
            while n > 0:
                k = min(n, 16)
                out.append(I('s_nop', k - 1, note='hazard'))
                n -= k
            pos += need
        out.append(i)
        hist.append((i, pos, D, U))
        pos += states(i)
        hist = [h for h in hist if pos - h[1] <= 20]
    return out, nops


def finalize(prog):
    p = insert_waits(prog)
    p, nops = pad_hazards(p)
    return p, nops


def text(prog):
    return '\n'.join(i.fmt() for i in prog) + '\n'


def listsched(items, vlat=700, dslat=110, t_start=0, inorder=0):
    nodes = []
    rel = []
    for g in items:
        t0 = 0
        if isinstance(g, tuple):
            g, t0 = g
        g = g if isinstance(g, list) else [g]
        nodes.append(g)
        rel.append(t0)
    n = len(nodes)

    def keys(lst):
        o = []
        for x in lst:
            if isinstance(x, Sub):
                o += x.vregs()
            else:
                o.append(x)
        return o
    preds = [dict() for _ in range(n)]
    lastdef, readers = {}, {}
    last_vm = None
    last_bar = None
    ds_since_bar = []
    last_dsw = None
    dsr_since_w = []
    owner = {}
    for k, g in enumerate(nodes):
        for i in g:
            owner[id(i)] = k

    def lat(p, c_inst, same_c):
        if p.kind == 'mfma':
            if same_c:
                return 4 * p.passes
            return 36 if p.passes == 4 else 52
        if p.kind == 'dsr':
            return dslat
        if p.kind == 'vld':
            return vlat
        if p.kind == 'smem':
            return 200
        if p.kind == 'valu' and c_inst.kind == 'mfma':
            return 12
        if p.kind == 'valu' and ('_dpp' in c_inst.op or c_inst.op.startswith('v_permlane')):
            return 12
        if p.trans:
            return 12
        return 4

    def dep(a, b, l):
        if a is not None and a != b:
            preds[b][a] = max(preds[b].get(a, 0), l)
    for k, g in enumerate(nodes):
        for i in g:
            if i.op == 'wait':
                for t in i.targets:
                    if id(t) in owner:
                        dep(owner[id(t)], k, {'dsr': dslat, 'dsw': 60}.get(t.kind, vlat))
            for u in keys(i.uses):
                if u in lastdef:
                    a, p = lastdef[u]
                    same = i.kind == 'mfma' and p.kind == 'mfma' and isinstance(i.ops[3], Sub) and u in i.ops[3].vregs() and p.op == i.op
                    dep(a, k, lat(p, i, same))
            for d in keys(i.defs):
                if d in lastdef:
                    a, p = lastdef[d]
                    if not (i.kind == 'mfma' and p.kind == 'mfma'):
                        dep(a, k, lat(p, i, False) if p.kind in ('mfma', 'dsr', 'vld') else 4)
                    else:
                        dep(a, k, 4)
                for a in readers.get(d, []):
                    dep(a, k, 4)
            for u in keys(i.uses):
                readers.setdefault(u, []).append(k)
            for d in keys(i.defs):
                lastdef[d] = (k, i)
                readers[d] = []
            if i.kind in ('vld', 'vst', 'dma'):
                dep(last_vm, k, 4)
                last_vm = k
                if i.kind == 'dma':
                    dep(last_bar, k, 4)
            if i.kind in ('dsr', 'dsw'):
                dep(last_bar, k, 4)
                ds_since_bar.append(k)
                dep(last_dsw, k, 4)
                if i.kind == 'dsw':
                    for a in dsr_since_w:
                        dep(a, k, 4)
                    dsr_since_w = []
                    last_dsw = k
                else:
                    dsr_since_w.append(k)
            if i.op == 's_barrier':
                for a in ds_since_bar:
                    dep(a, k, 4)
                dep(last_bar, k, 4)
                ds_since_bar = []
                last_bar = k
            if i.op.startswith('s_cbranch'):
                dep(last_vm, k, 4)
                last_vm = k
    dur = [sum(0 if (i.kind == 'pseudo' and i.op != 'wait') else (8 if (i.trans or i.kind == 'mfma') else 4) for i in g) for g in nodes]
    succ = [[] for _ in range(n)]
    for b in range(n):
        for a, l in preds[b].items():
            succ[a].append((b, l))
    prio = [0] * n
    for a in range(n - 1, -1, -1):
        prio[a] = max([l + prio[b] for b, l in succ[a]] + [dur[a]])
    ready_t = [max(t_start, r) for r in rel]
    done = [False] * n
    lo = 0
    cnt = [len(preds[b]) for b in range(n)]
    avail = [k for k in range(n) if cnt[k] == 0]
    t = t_start
    pipe = t_start
    out = []
    while avail:
        def start(k):
            s = ready_t[k]
            if nodes[k][0].kind == 'mfma':
                s = max(s, pipe)
            return s
        while lo < n and done[lo]:
            lo += 1
        pool = [k for k in avail if k < lo + inorder] if inorder else avail
        cand = [k for k in pool if start(k) <= t]
        if not cand:
            t = min(start(k) for k in pool)
            continue
        k = min(cand) if inorder else max(cand, key=lambda k: (prio[k], -k))
        avail.remove(k)
        done[k] = True
        out += nodes[k]
        tt = t
        for i in nodes[k]:
            if i.kind == 'mfma':
                tt = max(tt, pipe)
                pipe = tt + 4 * i.passes
            tt += 0 if (i.kind == 'pseudo' and i.op != 'wait') else (8 if (i.trans or i.kind == 'mfma') else 4)
        issue_last = tt - 4
        for b, l in succ[k]:
            ready_t[b] = max(ready_t[b], issue_last + l - (4 if nodes[k][-1].kind == 'mfma' or nodes[k][-1].trans else 0))
            cnt[b] -= 1
            if cnt[b] == 0:
                avail.append(b)
        t = tt
    assert len(out) == sum(len(g) for g in nodes)
    return out, t
```

```python
import struct
import sys
from asmlib import *

KNAME = 'recurrent_scan__spectral_gfnet__glu_gated_glu__prompt_kernel'

FW, FY, FE, FL, FZ = 0x1000, 0x2000, 0x3000, 0x4000, 0x5000
STATS, WT, YT, ZT, HH, STAMPS = 0x10000, 0x100000, 0x400000, 0x800000, 0x1000000, 0x1800000
WS_SIZE = 0x2000000
BIG = 0x40000000
TAGSTEP = 0x9E3779B9
LOG2E = 1.4426950408889634
SLOT = 32768


def fl(x):
    return struct.unpack('<I', struct.pack('<f', x))[0]


def lit(x):
    return hex(fl(x))


class P:
    diag = False
    stop = 99
    npre = 420
    wt_load = 45
    stat_load = 120
    eflag = 84
    poll_e = 112
    poll_yw = 88
    chk_yw = 112
    poll_l = 10
    chk_l = 34
    lflag = 1300
    zflag = 30
    poll_z = 10
    chk_z = 34
    cap = 6


class Gen:
    def __init__(s):
        s.slow = []
        s.lab = 0
        S = lambda n, pin: R(n, 's', pin=pin)
        s.KA = S(2, 0)
        s.WG = S(1, 2)
        s.dX, s.dWR, s.dWI, s.dWG, s.dWU, s.dWD, s.dO, s.dWS = [S(4, 4 + 4 * k) for k in range(8)]
        s.V0 = R(1, 'v', pin=0)
        s.nstamp = 0

    def sreg(s, name='s', n=1):
        return R(n, 's', name)

    def v(s, name='t', n=1, cls='v'):
        return R(n, cls, name)

    def stamp(s, k):
        if not P.diag:
            return []
        t = s.sreg('st', 2)
        m = I('s_memtime', t)
        return [[m, WAIT(m), I('v_writelane_b32', s.vST, t[0], k)]]

    def poll_issue(s, voff, soff, n=1, name='fl'):
        d = s.v(name, n)
        op = 'buffer_load_dword' + ('' if n == 1 else f'x{n}')
        return d, I(op, d, voff, s.dWS, soff, mods='offen sc1')

    def poll_check(s, d, ld):
        s.lab += 1
        a, b = f'L_poll{s.lab}', f'L_back{s.lab}'
        tagreg = d[d.n - 1]
        br = I('s_cbranch_vccnz', a, extra_use=[ld.ops[1], ld.ops[3], s.sCNT] if isinstance(ld.ops[3], Sub) else [ld.ops[1], s.sCNT])
        s.slow.append([I('label', a), I('s_mov_b32', s.sCNT, 0), I('label', a + 'x'),
                       I('s_sleep', 2),
                       I(ld.op, *ld.ops, mods=ld.mods), I('s_waitcnt', mods='vmcnt(0)'),
                       I('v_cmp_ne_u32', 'vcc', s.sTAG, tagreg), I('s_nop', 4),
                       I('s_cbranch_vccz', b),
                       I('s_add_u32', s.sCNT, s.sCNT, 1), I('s_cmp_lt_u32', s.sCNT, 0x8000),
                       I('s_cbranch_scc1', a + 'x'), I('s_branch', b)])
        return [I('v_cmp_ne_u32', 'vcc', s.sTAG, tagreg), br, I('label', b)]

    def flag_store(s, soff):
        return I('buffer_store_dword', s.vTAG, s.vM0, s.dWS, soff, mods='offen sc1')

    def prologue(s):
        o = []
        a = o.append
        a(I('s_cmp_ge_u32', s.WG, 256))
        a(I('s_cbranch_scc1', 'L_end'))
        lds = []
        for d, off in ((s.dX, 0), (s.dWG, 32), (s.dWU, 40), (s.dWS, 72), (s.dWR, 8), (s.dWI, 16), (s.dWD, 48), (s.dO, 56)):
            lds.append(I('s_load_dwordx2', d[0:2], s.KA, off))
        o += lds
        if P.diag:
            s.vST = s.v('stampv')
            t = s.sreg('rt', 2)
            t2 = s.sreg('rt2', 2)
            a(I('v_mov_b32', s.vST, 0))
            m = I('s_memrealtime', t)
            m2 = I('s_memtime', t2)
            o += [m, m2]
        for d, n in ((s.dX, 2097152), (s.dWG, 1835008), (s.dWU, 1835008), (s.dWS, WS_SIZE), (s.dWR, 1052672), (s.dWI, 1052672),
                     (s.dWD, 1835008), (s.dO, 2097152)):
            a(I('s_mov_b32', d[2], n))
            a(I('s_mov_b32', d[3], 0x20000))
        s.vL, s.sW = s.v('lane'), s.sreg('wave')
        t = s.v()
        a(I('v_lshrrev_b32', t, 6, s.V0))
        a(I('v_and_b32', s.vL, 63, s.V0))
        a(I('v_readfirstlane_b32', s.sW, t))
        s.sXCD, s.sIDX, s.sQ, s.sCT = s.sreg('xcd'), s.sreg('idx'), s.sreg('q'), s.sreg('ct')
        a(I('s_and_b32', s.sXCD, s.WG, 7))
        a(I('s_lshr_b32', s.sIDX, s.WG, 3))
        a(I('s_and_b32', s.sQ, s.sIDX, 3))
        a(I('s_lshr_b32', s.sCT, s.sIDX, 2))
        s.sLW = s.sreg('lw')
        a(I('s_lshl_b32', s.sLW, s.sW, 13))
        s.vL16 = s.v('l16')
        a(I('v_lshlrev_b32', s.vL16, 4, s.vL))
        s.sCNT = s.sreg('cnt')
        a(I('s_mov_b32', s.sCNT, 0))
        a(I('s_cmp_eq_u32', s.sCT, 7))
        a(I('s_cbranch_scc1', 'L_helper'))
        s.kloads = lds
        if P.diag:
            s.diag_regs = (m.ops[0], m2.ops[0])
        return o

    def after_kernarg(s):
        o = []
        a = o.append
        s.sE = s.sreg('epoch')
        s.ldE = I('s_load_dword', s.sE, s.dWS[0:2], 0)
        a(s.ldE)
        pc = s.sreg('pc', 2)
        t, d, u = s.v(), s.v(), s.sreg()
        s.lab += 1
        lb = f'L_pc{s.lab}'
        a(I('s_lshl_b32', u, s.sIDX, 2))
        a(I('s_add_u32', u, u, s.sW))
        a(I('s_lshl_b32', u, u, 10))
        a(I('v_and_b32', t, 7, s.vL))
        a(I('v_lshlrev_b32', t, 7, t))
        a(I('v_add_u32', t, u, t))
        a(I('s_getpc_b64', pc))
        a(I('label', lb))
        a(I('v_min_u32', t, f'L_codeend-{lb}-4', t))
        a(I('global_load_dword', d, t, pc))
        return o

    def tag_setup(s):
        s.sTAG, s.vTAG, s.vM0 = s.sreg('tag'), s.v('vtag'), s.v('vm0')
        return [I('s_add_u32', s.sTAG, s.sE, TAGSTEP), I('v_mov_b32', s.vTAG, s.sTAG),
                I('v_min_u32', s.vM0, 1, s.vL), I('v_lshlrev_b32', s.vM0, 30, s.vM0)]

    def lane_floats(s):
        o = []
        a = o.append
        rho, q, t, u = s.v(), s.v(), s.v(), s.v()
        s.fJ1, s.fQ, s.fMU = s.v('fj1'), s.v('fq'), s.v('fmu')
        w16 = s.sreg()
        a(I('v_and_b32', rho, 15, s.vL))
        a(I('v_lshrrev_b32', q, 4, s.vL))
        a(I('s_lshl_b32', w16, s.sW, 4))
        a(I('v_add_u32', t, w16, rho))
        a(I('v_cvt_f32_u32', s.fJ1, t))
        a(I('v_cvt_f32_u32', s.fQ, q))
        a(I('v_and_b32', t, 12, rho))
        a(I('v_add_u32', u, rho, t))
        a(I('v_cvt_f32_u32', s.fMU, u))
        return o

    def sincos(s, step, k, base):
        p, c, sn = s.v(), s.v(), s.v()
        if k == 0:
            return [I('v_cos_f32', c, base), I('v_sin_f32', sn, base)], c, sn
        return [I('v_fmamk_f32', p, step, lit(k), base), I('v_cos_f32', c, p), I('v_sin_f32', sn, p)], c, sn

    def consts_p2(s):
        o = []
        a = o.append
        s.C1A = [s.v(f'c1a{k}', 4, 'a') for k in range(4)]
        s.C1B = [s.v(f'c1b{k}', 4, 'a') for k in range(4)]
        st, ba = s.v(), s.v()
        a(I('v_mul_f32', st, lit(1 / 64), s.fJ1))
        a(I('v_mul_f32', ba, st, s.fQ))
        a(I('v_mul_f32', ba, 4.0, ba))
        pend = []
        for ks in range(4):
            for i in range(4):
                g, c, sn = s.sincos(st, 16 * ks + i, ba)
                ta, tb = s.v(), s.v()
                o += g
                o += pend
                pend = [I('v_cvt_pk_bf16_f32', ta, c, sn), I('v_cvt_pk_bf16_f32', tb, neg(sn), c),
                        I('v_accvgpr_write_b32', s.C1A[ks][i], ta), I('v_accvgpr_write_b32', s.C1B[ks][i], tb)]
        s.C2 = [[s.v(f'c2{t}{k}', 4, 'a') for k in range(2)] for t in range(2)]
        f8q = s.v()
        a(I('v_mul_f32', f8q, lit(8.0), s.fQ))
        mus = []
        for t in range(2):
            mu = s.v()
            if t:
                a(I('v_add_f32', mu, 4.0, s.fMU))
            else:
                mu = s.fMU
            mus.append(mu)
            st, ba = s.v(), s.v()
            a(I('v_mul_f32', st, lit(1 / 32), mu))
            a(I('v_mul_f32', ba, st, f8q))
            for ks in range(2):
                for r in range(4):
                    g, c, sn = s.sincos(st, 4 * ks + r, ba)
                    ta = s.v()
                    o += g
                    o += pend
                    pend = [I('v_cvt_pk_bf16_f32', ta, c, sn), I('v_accvgpr_write_b32', s.C2[t][ks][r], ta)]
        o += pend
        s.T1 = [[None] * 4 for _ in range(2)]
        st, ba = s.v(), s.v()
        a(I('v_mul_f32', st, lit(1 / 2048), s.fJ1))
        a(I('v_mul_f32', ba, st, f8q))
        for tb in range(2):
            for r in range(4):
                g, c, sn = s.sincos(st, 4 * tb + r, ba)
                c.name = sn.name = 'tw'
                o += g
                s.T1[tb][r] = (c, sn)
        s.T3 = [[None] * 4 for _ in range(2)]
        jb, w16 = s.v(), s.sreg()
        a(I('s_lshl_b32', w16, s.sW, 4))
        a(I('v_cvt_f32_u32', jb, w16))
        a(I('v_fmamk_f32', jb, s.fQ, lit(4.0), jb))
        for nt in range(2):
            st, ba = s.v(), s.v()
            a(I('v_mul_f32', st, lit(1 / 2048), mus[nt]))
            a(I('v_mul_f32', ba, st, jb))
            for r in range(4):
                g, c, sn = s.sincos(st, r, ba)
                c.name = sn.name = 'tw'
                o += g
                s.T3[nt][r] = (c, sn)
        return o

    def own_xor(s):
        s.sOWN = s.sreg('own')
        t = s.sreg()
        return [I('s_and_b32', s.sOWN, s.sW, 1), I('s_lshl_b32', s.sOWN, s.sOWN, 5), I('s_lshr_b32', t, s.sW, 1),
                I('s_lshl_b32', t, t, 4), I('s_add_u32', s.sOWN, s.sOWN, t)]

    def consts_finv(s):
        o = []
        a = o.append
        s.FV = [[s.v(f'fv{nq}{j}', 4, 'a') for j in range(8)] for nq in range(2)]
        n0, cb, h2, c64 = s.v(), s.v(), s.v(), s.sreg()
        nb = s.sreg()
        a(I('v_and_b32', n0, 31, s.vL))
        a(I('v_xor_b32', n0, s.sOWN, n0))
        a(I('s_lshl_b32', nb, s.sCT, 6))
        a(I('v_add_u32', n0, nb, n0))
        a(I('v_lshrrev_b32', h2, 5, s.vL))
        a(I('v_lshlrev_b32', h2, 1, h2))
        a(I('s_lshl_b32', c64, s.sW, 6))
        a(I('v_add_u32', h2, c64, h2))
        a(I('v_cvt_f32_u32', cb, h2))
        msk = s.sreg('nyq', 2)
        sp = s.v()
        a(I('v_cmp_eq_u32', msk, 0, h2))
        a(I('v_and_b32', sp, 1, n0))
        a(I('v_lshlrev_b32', sp, 15, sp))
        a(I('v_or_b32', sp, 0x3f00, sp))
        pend = []
        for nq in range(2):
            n, st, ba = s.v(), s.v(), s.v()
            if nq:
                a(I('v_xor_b32', n, 32, n0))
            else:
                n = n0
            a(I('v_cvt_f32_u32', st, n))
            a(I('v_mul_f32', st, lit(1 / 512), st))
            a(I('v_mul_f32', ba, st, cb))
            for j in range(8):
                for i in range(4):
                    g, c, sn = s.sincos(st, 8 * j + (0, 1, 4, 5)[i], ba)
                    ta = s.v()
                    o += g
                    o += pend
                    pend = [I('v_cvt_pk_bf16_f32', ta, c, sn)]
                    if j == 0 and i == 0:
                        pend.append(I('v_cndmask_b32', ta, ta, sp, msk))
                    pend.append(I('v_accvgpr_write_b32', s.FV[nq][j][i], ta))
        o += pend
        return o

    def wt_job(s):
        A, B, C = [], [], []
        a = A.append
        cg, rg, u, vv, t, t2 = [s.sreg() for _ in range(6)]
        a(I('s_and_b32', cg, s.WG, 3))
        a(I('s_lshr_b32', rg, s.WG, 2))
        a(I('s_and_b32', u, rg, 7))
        a(I('s_lshr_b32', vv, rg, 3))
        so, sf = s.sreg(), s.sreg()
        a(I('s_lshl_b32', t, u, 3))
        a(I('s_lshl_b32', t2, vv, 8))
        a(I('s_add_u32', t, t, t2))
        a(I('s_lshl_b32', t2, s.sW, 1))
        a(I('s_add_u32', t, t, t2))
        a(I('s_mul_i32', t, t, 514))
        a(I('s_lshl_b32', t2, cg, 7))
        a(I('s_add_u32', so, t, t2))
        A.append([I('s_cmp_eq_u32', cg, 0), I('s_cselect_b32', t2, 512, t2)])
        a(I('s_add_u32', sf, t, t2))
        r0, r1, vo, vf, mk = [s.v() for _ in range(5)]
        a(I('v_lshrrev_b32', r0, 5, s.vL))
        a(I('v_bfe_u32', r1, s.vL, 3, 2))
        a(I('v_lshl_add_u32', r0, r1, 6, r0))
        a(I('v_mul_u32_u24', vf, 514, r0))
        a(I('v_and_b32', r1, 7, s.vL))
        a(I('v_lshl_add_u32', vo, r1, 4, vf))
        a(I('v_min_u32', mk, 1, r1))
        a(I('v_add_u32', mk, -1, mk))
        a(I('v_and_b32', mk, 0xffff, mk))
        dr, di, fr, fi = s.v('wtr', 4), s.v('wti', 4), s.v(), s.v()
        a(I('buffer_load_dwordx4', dr, vo, s.dWR, so, mods='offen'))
        a(I('buffer_load_dwordx4', di, vo, s.dWI, so, mods='offen'))
        a(I('buffer_load_ushort', fr, vf, s.dWR, sf, mods='offen'))
        a(I('buffer_load_ushort', fi, vf, s.dWI, sf, mods='offen'))
        wa, w1k = s.v(), s.sreg()
        b = B.append
        b(I('s_lshl_b32', w1k, s.sW, 10))
        b(I('s_add_u32', w1k, w1k, 4 * SLOT))
        b(I('v_add_u32', wa, w1k, s.vL16))
        b(I('v_bfi_b32', dr[0], mk, fr, dr[0]))
        b(I('v_bfi_b32', di[0], mk, fi, di[0]))
        w0 = I('ds_write_b128', wa, dr)
        w1 = I('ds_write_b128', wa, di, mods='offset:4096')
        B += [w0, w1]
        c = C.append
        ra, x, y, st = s.v(), s.v(), s.v(), s.sreg()
        c(I('v_lshrrev_b32', x, 2, s.vL))
        c(I('v_and_b32', y, 3, s.vL))
        c(I('v_lshlrev_b32', y, 3, y))
        c(I('v_lshl_add_u32', ra, x, 7, y))
        c(I('s_lshl_b32', st, s.sW, 5))
        c(I('s_add_u32', st, st, 4 * SLOT))
        c(I('v_add_u32', ra, st, ra))
        rd = [[s.v('wq', 2) for _ in range(2)] for _ in range(2)]
        for hi in range(2):
            for m in range(2):
                c(I('ds_read_b64_tr_b16', rd[hi][m], ra, mods=f'offset:{hi * 2048 + m * 4096}'))
        sl, sh = s.sreg(), s.sreg()
        c(I('s_mov_b32', sl, 0x05040100))
        c(I('s_mov_b32', sh, 0x07060302))
        va, so2 = s.v(), s.sreg()
        c(I('v_and_b32', x, 15, s.vL))
        c(I('v_lshlrev_b32', x, 13, x))
        c(I('v_lshrrev_b32', y, 4, s.vL))
        c(I('v_lshl_add_u32', va, y, 4, x))
        c(I('s_lshl_b32', so2, cg, 2))
        c(I('s_add_u32', so2, so2, s.sW))
        fo = s.sreg()
        c(I('s_lshl_b32', fo, so2, 6))
        c(I('s_add_u32', fo, fo, rg))
        c(I('s_lshl_b32', fo, fo, 2))
        c(I('s_add_u32', fo, fo, FW))
        c(I('s_lshl_b32', so2, so2, 17))
        for (src, msk_, sh_, dsh) in ((vv, 1, 0, 12), (u, 7, 1, 10), (vv, 7, 1, 8), (u, 1, 0, 7)):
            z = s.sreg()
            c(I('s_and_b32', z, src, msk_))
            if sh_:
                c(I('s_lshr_b32', z, z, sh_))
            c(I('s_lshl_b32', z, z, dsh))
            c(I('s_add_u32', so2, so2, z))
        c(I('s_add_u32', so2, so2, WT))
        sts = []
        for hi in range(2):
            o4 = s.v('wo', 4)
            for k in range(4):
                c(I('v_perm_b32', o4[k], rd[hi][1][k >> 1], rd[hi][0][k >> 1], (sl, sh)[k & 1]))
            stt = I('buffer_store_dwordx4', o4, va, s.dWS, so2, mods=f'offen offset:{hi * 64} sc1')
            sts.append(stt)
            c(stt)
        return A, B, [w0, w1], C, [[WAIT(*sts), s.flag_store(fo)]]

    def tail_setup(s):
        o = []
        a = o.append
        s.sSB = s.sreg('sb')
        a(I('s_lshl_b32', s.sSB, s.sXCD, 2))
        a(I('s_add_u32', s.sSB, s.sSB, s.sQ))
        rp, t = s.sreg(), s.sreg()
        a(I('s_mul_i32', rp, s.sCT, 7))
        a(I('s_lshr_b32', rp, rp, 2))
        a(I('s_mul_i32', t, s.sQ, 3))
        a(I('s_add_u32', rp, rp, t))
        o.append([I('s_sub_u32', t, rp, 14), I('s_cmp_ge_u32', rp, 14), I('s_cselect_b32', rp, t, rp)])
        s.sPP = []
        w14 = s.sreg()
        a(I('s_mul_i32', w14, s.sW, 14))
        for jp in range(14):
            p, z = s.sreg(f'pp{jp}'), s.sreg()
            o.append([I('s_add_u32', p, rp, jp), I('s_sub_u32', z, p, 14), I('s_cmp_ge_u32', p, 14), I('s_cselect_b32', p, z, p)])
            a(I('s_add_u32', p, p, w14))
            a(I('s_lshl_b32', p, p, 11))
            s.sPP.append(p)
        s.sCT128 = s.sreg('ct128')
        a(I('s_lshl_b32', s.sCT128, s.sCT, 7))
        s.sHB = s.sreg('hb')
        a(I('s_mul_i32', s.sHB, s.sSB, 2 * 112 * 1024))
        a(I('s_add_u32', s.sHB, s.sHB, HH))
        x, y = s.v(), s.v()
        s.vSW = s.v('swz')
        a(I('v_bfe_u32', x, s.vL, 4, 1))
        a(I('v_lshlrev_b32', x, 2, x))
        a(I('v_and_b32', y, 7, s.vL))
        a(I('v_xor_b32', x, x, y))
        a(I('v_lshlrev_b32', s.vSW, 4, x))
        s.vD = [s.v(f'vd{i}') for i in range(4)]
        a(I('v_lshrrev_b32', y, 3, s.vL))
        a(I('v_lshl_add_u32', s.vD[0], y, 10, s.vSW))
        for i in range(1, 4):
            a(I('v_add_u32', s.vD[i], i * 7168, s.vD[0]))
        return o

    def wd_unit(s, jp):
        if jp < 8:
            return (4, 0, 1, 2)[jp >> 1] * SLOT + (jp & 1) * 4096
        if jp == 8:
            return 3 * SLOT
        return s.wd_unit(jp - 9)

    def wd_dma(s, jp):
        so = s.sreg()
        g = [[I('s_lshl_b32', so, s.sPP[jp], 4)], [I('s_add_u32', so, so, s.sCT128)]]
        d = [I('buffer_load_dwordx4', s.vD[i], s.dWD, so, mods=f'offen offset:{i * 1024} lds') for i in range(4)]
        g.append([I('s_add_u32', 'm0', s.sLW, s.wd_unit(jp)), d[0]])
        g += [[x] for x in d[1:]]
        s.wdtok[jp] = d[-1]
        return g

    def tr_addr(s, own):
        o = []
        a = o.append
        x, y, z = s.v(), s.v(), s.v()
        r0, r1 = s.v('tra'), s.v('tra')
        a(I('v_lshrrev_b32', x, 5, s.vL))
        a(I('v_bfe_u32', y, s.vL, 2, 2))
        a(I('v_lshl_add_u32', x, x, 2, y))
        a(I('v_lshlrev_b32', x, 7, x))
        a(I('v_bfe_u32', y, s.vL, 4, 1))
        a(I('v_lshlrev_b32', y, 5, y))
        a(I('v_and_b32', z, 3, s.vL))
        a(I('v_lshl_add_u32', y, z, 3, y))
        a(I('v_bfe_u32', z, s.vL, 3, 1))
        a(I('v_lshlrev_b32', z, 6, z))
        a(I('v_xor_b32', y, y, z))
        if own:
            t = s.sreg()
            a(I('s_lshl_b32', t, s.sOWN, 1))
            a(I('v_xor_b32', y, t, y))
        a(I('v_add3_u32', r0, x, y, s.sLW))
        a(I('v_xor_b32', r1, 64, r0))
        return o, (r0, r1)

    def h_load(s, sq, j, cls='any'):
        key = (sq, j >> 1)
        g = []
        if key not in s.hso:
            so = s.sreg()
            s.hso[key] = so
            g.append(I('s_add_u32', so, s.sPP[j >> 1], s.sHB if sq == 0 else s.sHB2))
        d = s.v(f'h{sq}_', 4, cls)
        g.append(I('buffer_load_dwordx4', d, s.vL16, s.dWS, s.hso[key], mods=f'offen offset:{(j & 1) * 1024} sc1'))
        s.hfrag[(sq, j)] = d
        return g

    def yw_poll(s):
        A, B = [], []
        x, y, sy, sw = s.v(), s.v('l4'), s.sreg(), s.sreg()
        s.vL4 = y
        A.append(I('v_lshlrev_b32', y, 2, s.vL))
        A.append(I('v_and_b32', x, 127, y))
        A.append(I('s_lshr_b32', sy, s.WG, 6))
        A.append(I('s_lshl_b32', sy, sy, 7))
        A.append(I('s_add_u32', sy, sy, FY))
        A.append(I('s_lshr_b32', sw, s.WG, 4))
        A.append(I('s_lshl_b32', sw, sw, 8))
        A.append(I('s_add_u32', sw, sw, FW))
        dy, ly = s.poll_issue(x, sy)
        dw, lw = s.poll_issue(y, sw)
        A += [ly, lw]
        sc = s.sreg('col')
        s.sCOL = sc
        B.append(I('s_lshl_b32', sc, s.WG, 13))
        so, so2 = s.sreg(), s.sreg()
        B.append(I('s_add_u32', so, sc, YT))
        B.append(I('s_add_u32', so2, sc, YT + 4096))
        B.append(s.poll_check(dy, ly))
        s.Y = [[None] * 4 for _ in range(2)]
        for tb in range(2):
            for ks in range(4):
                d = s.v('y', 4, 'any')
                s.Y[tb][ks] = d
                f = ks * 2 + tb
                B.append(I('buffer_load_dwordx4', d, s.vL16, s.dWS, (so, so2)[f >> 2], mods=f'offen offset:{(f & 3) * 1024} sc1'))
        B.append(s.poll_check(dw, lw))
        s.WF = []
        w1k = s.sreg()
        B.append(I('s_lshl_b32', w1k, s.sW, 10))
        B.append(I('s_add_u32', w1k, w1k, sc))
        for m in range(2):
            d, so3 = s.v('wf', 4), s.sreg()
            B.append(I('s_add_u32', so3, w1k, WT + m * 4096))
            B.append(I('buffer_load_dwordx4', d, s.vL16, s.dWS, so3, mods='offen sc1'))
            s.WF.append(d)
        return A, B

    def hflag_poll(s, base):
        A = []
        if not hasattr(s, 'vF28') or s.vF28 is None:
            s.vF28 = s.v('f28')
            A.append(I('v_min_u32', s.vF28, 27, s.vL))
            A.append(I('v_lshlrev_b32', s.vF28, 2, s.vF28))
        so = s.sreg()
        A.append(I('s_lshl_b32', so, s.sXCD, 2))
        A.append(I('s_add_u32', so, so, s.sW))
        A.append(I('s_lshl_b32', so, so, 7))
        A.append(I('s_add_u32', so, so, base))
        d, ld = s.poll_issue(s.vF28, so)
        A.append(ld)
        return A, [s.poll_check(d, ld)]

    def glu_epi(s, acc, G, so):
        o = []
        h = s.v('hout', 4)
        for p in range(0, 8, 2):
            for k in (p, p + 1):
                o.append(I('v_mul_f32', acc[k], G[1], acc[k]))
            for k in (p, p + 1):
                o.append(I('v_exp_f32', acc[k], acc[k]))
            for k in (p, p + 1):
                o.append(I('v_fma_f32', acc[k], acc[k], G[2], G[2]))
            for k in (p, p + 1):
                o.append(I('v_rcp_f32', acc[k], acc[k]))
            for k in (p, p + 1):
                o.append(I('v_mul_f32', acc[8 + k], acc[k], acc[8 + k]))
            o.append(I('v_cvt_pk_bf16_f32', h[p >> 1], acc[8 + p], acc[9 + p]))
        st = I('buffer_store_dwordx4', h, s.vL16, s.dWS, so, mods='offen sc1')
        o.append(st)
        return o, st

    def gemm_path(s):
        o = []
        a = o.append
        s.wdtok, s.hso, s.hfrag, s.vF28 = {}, {}, {}, None
        mt, nt, rot, t = s.sreg('mt'), s.sreg('nt'), s.sreg('rot'), s.sreg()
        a(I('s_and_b32', t, s.sXCD, 1))
        a(I('s_lshl_b32', mt, t, 2))
        a(I('s_add_u32', mt, mt, s.sQ))
        a(I('s_lshr_b32', nt, s.sXCD, 1))
        a(I('s_mul_i32', nt, nt, 7))
        a(I('s_add_u32', nt, nt, s.sCT))
        a(I('s_lshl_b32', rot, s.sQ, 1))
        a(I('s_add_u32', rot, rot, t))
        a(I('s_add_u32', rot, rot, nt))
        sXM, sXT, sWB = s.sreg('xm'), s.sreg('xt'), s.sreg('wb')
        a(I('s_lshl_b32', sXM, mt, 18))
        a(I('s_lshl_b32', sXT, s.sW, 16))
        a(I('s_add_u32', sXT, sXT, sXM))
        a(I('s_mul_i32', sWB, s.sW, 16 * 3584))
        a(I('s_lshl_b32', t, nt, 7))
        a(I('s_add_u32', sWB, sWB, t))
        vX = [s.v(f'vx{i}') for i in range(4)]
        vG = [s.v(f'vg{i}') for i in range(2)]
        vU = [s.v(f'vu{i}') for i in range(2)]
        r8, p, x, y = s.v(), s.v(), s.v(), s.v()
        a(I('v_lshrrev_b32', r8, 3, s.vL))
        a(I('v_and_b32', p, 7, s.vL))
        a(I('v_lshrrev_b32', x, 4, s.vL))
        a(I('v_xor_b32', x, x, p))
        a(I('v_lshlrev_b32', x, 4, x))
        a(I('v_lshl_add_u32', vX[0], r8, 10, x))
        a(I('v_xor_b32', y, 64, vX[0]))
        a(I('v_add_u32', vX[1], 7168, y))
        a(I('v_add_u32', vX[2], 2 * 7168, vX[0]))
        a(I('v_add_u32', vX[3], 3 * 7168, y))
        a(I('v_bfe_u32', x, s.vL, 4, 1))
        a(I('v_lshlrev_b32', x, 1, x))
        a(I('v_xor_b32', x, x, p))
        a(I('v_lshlrev_b32', x, 4, x))
        a(I('v_mul_u32_u24', y, 3584, r8))
        a(I('v_add_u32', vG[0], x, y))
        a(I('v_add_u32', vG[1], 8 * 3584 - 1024, vG[0]))
        a(I('v_xor_b32', vU[0], 64, vG[0]))
        a(I('v_xor_b32', vU[1], 64, vG[1]))
        stok = {}

        def stage_dma(tt):
            sl = (tt % 4) * SLOT
            g = []
            if tt < 8:
                sk, sx, sw_ = s.sreg(), s.sreg(), s.sreg()
                g += [[I('s_add_u32', sk, rot, tt)], [I('s_and_b32', sk, sk, 7)], [I('s_lshl_b32', sx, sk, 7)],
                      [I('s_add_u32', sx, sx, sXT)], [I('s_mul_i32', sw_, sk, 64 * 3584)], [I('s_add_u32', sw_, sw_, sWB)]]
                d = [I('buffer_load_dwordx4', vG[i], s.dWG, sw_, mods=f'offen offset:{i * 1024} lds') for i in range(2)]
                g += [[I('s_add_u32', 'm0', s.sLW, sl + 4096), d[0]], [d[1]]]
                d = [I('buffer_load_dwordx4', vU[i], s.dWU, sw_, mods=f'offen offset:{i * 1024} lds') for i in range(2)]
                g += [[I('s_add_u32', 'm0', s.sLW, sl + 6144), d[0]], [d[1]]]
                d = [I('buffer_load_dwordx4', vX[i], s.dX, sx, mods=f'offen offset:{i * 1024} lds') for i in range(4)]
                g += [[I('s_add_u32', 'm0', s.sLW, sl), d[0]]] + [[z] for z in d[1:]]
            else:
                for e in range(2):
                    sx = s.sreg()
                    g.append([I('s_add_u32', sx, sKW[e], (tt - 8) * 65536)])
                    d = [I('buffer_load_dwordx4', vX[i], s.dX, sx, mods=f'offen offset:{i * 1024} lds') for i in range(4)]
                    g += [[I('s_add_u32', 'm0', s.sLW, sl + e * 4096), d[0]]] + [[z] for z in d[1:]]
            stok[tt] = d[-1]
            return g
        flat = lambda gs: [i for g in gs for i in (g if isinstance(g, list) else [g])]
        a(WAIT(*s.kloads))
        o += flat(stage_dma(0))
        g1 = stage_dma(1)
        o += flat(g1[:P.n1])
        o += s.after_kernarg()
        if P.diag:
            o += [I('v_writelane_b32', s.vST, s.diag_regs[0][0], 62), I('v_writelane_b32', s.vST, s.diag_regs[1][0], 0)]
        vB = [[s.v(f'vb{w}{k}') for k in range(4)] for w in range(2)]
        vA = [s.v('va0'), s.v('va1')]
        row, hh, f, z = s.v(), s.v(), s.v(), s.v()
        a(I('v_and_b32', row, 31, s.vL))
        a(I('v_lshrrev_b32', hh, 5, s.vL))
        a(I('v_bfe_u32', f, s.vL, 1, 3))
        a(I('v_xor_b32', f, f, hh))
        a(I('v_lshlrev_b32', f, 4, f))
        a(I('v_lshl_add_u32', vB[0][0], row, 7, f))
        for k in range(1, 4):
            a(I('v_xor_b32', vB[0][k], 32 * k, vB[0][0]))
        for k in range(4):
            a(I('v_add_u32', vB[1][k], 65536, vB[0][k]))
        vROW16 = s.v('row16')
        a(I('v_lshlrev_b32', vROW16, 4, row))
        up, rr = s.v(), s.v()
        a(I('v_bfe_u32', up, s.vL, 4, 1))
        a(I('v_bfe_u32', rr, s.vL, 2, 2))
        a(I('v_lshl_add_u32', rr, hh, 3, rr))
        a(I('v_lshlrev_b32', rr, 7, rr))
        a(I('v_lshl_add_u32', rr, up, 11, rr))
        a(I('v_bfe_u32', z, s.vL, 3, 2))
        a(I('v_xor_b32', z, s.sW, z))
        a(I('v_lshl_add_u32', rr, z, 5, rr))
        a(I('v_and_b32', z, 3, s.vL))
        a(I('v_lshl_add_u32', rr, z, 3, rr))
        a(I('v_add_u32', vA[0], 4096, rr))
        a(I('v_add_u32', vA[1], 4096 + 65536, rr))
        SEL = s.v('sel', 4)
        a(I('v_xor_b32', z, up, s.vL))
        a(I('v_and_b32', z, 1, z))
        a(I('v_add_u32', z, -1, z))
        for k in range(4):
            a(I('v_and_b32', SEL[k], 0x3f803f80, z))
        sKW = [s.sreg('kw0'), s.sreg('kw1')]
        qc = Queue('const')
        for e in range(2):
            qc.addeach([I('s_lshl_b32', sKW[e], s.sW, 1), I('s_add_u32', sKW[e], sKW[e], rot), I('s_add_u32', sKW[e], sKW[e], e),
                        I('s_and_b32', sKW[e], sKW[e], 7), I('s_lshl_b32', sKW[e], sKW[e], 7), I('s_add_u32', sKW[e], sKW[e], sXM),
                        I('s_add_u32', sKW[e], sKW[e], 32768)])
        qc.addeach(s.own_xor() + s.lane_floats() + s.consts_finv() + s.consts_p2())
        for g in s.tail_setup():
            qc.add(g)
        n = 0
        while n < P.npre and qc.items:
            it = qc.items.pop(0)
            o += it.insts
            n += it.cost
        o += flat(g1[P.n1:])
        o += flat(s.stamp(1))

        def xaddr(slot, off):
            ad = slot * SLOT + off
            return ad >> 16, ad & 0xffff
        acc = [s.v(f'acc{i}', 16) for i in range(8)]
        AF = [s.v(f'af{k}', 4, 'a') for k in range(32)]
        CS = s.v('cs', 4)

        def reads1(k):
            tt, ks = k >> 2, k & 3
            g = []
            w, off = xaddr(tt % 4, ks * 8192)
            g.append(I('ds_read_b64_tr_b16', AF[k][0:2], vA[w], mods=f'offset:{off}'))
            g.append(I('ds_read_b64_tr_b16', AF[k][2:4], vA[w], mods=f'offset:{off + 512}'))
            bs = []
            for i in range(4):
                b = s.v('bf', 4)
                w, off = xaddr(tt % 4, i * 8192)
                g.insert(1 + (i > 0) + i, I('ds_read_b128', b, vB[w][ks], mods=f'offset:{off}'))
                bs.append(b)
            return g, bs
        a(WAIT(stok[0], s.ldE))
        a(I('s_barrier'))
        g, bs = reads1(0)
        o += g
        o += flat(s.stamp(2))
        qr, qd, qm = Queue('rd'), Queue('dma'), Queue('misc')
        beats = []
        for g in stage_dma(2):
            qd.add(g, 0, 14)
        qm.addeach(s.tag_setup(), 0, 20)
        wA, wB, wtok, wC, wF = s.wt_job()
        for k in range(32):
            b0 = 5 * k
            for i in range(4):
                beats.append([I('v_mfma_f32_32x32x16_bf16', acc[i], AF[k], bs[i], acc[i] if k else 0)])
            beats.append([I('v_mfma_f32_16x16x32_bf16', CS, SEL, AF[k], CS if k else 0)])
            if k < 31:
                if (k & 3) == 3:
                    tt = (k >> 2) + 1
                    tg = [stok[tt]] + (wtok if tt == P.wt_bar else [])
                    qr.add([WAIT(*tg), I('s_barrier')], b0, b0)
                    gs = stage_dma(tt + 2)
                    for n, g in enumerate(gs):
                        qd.add(g, b0 + (n * 16) // len(gs), b0 + 18)
                g, bs = reads1(k + 1)
                for n, x_ in enumerate(g):
                    qr.add(x_, b0, b0 + (1 if n < 4 else 2))
        wb = 5 * (4 * P.wt_bar - 1)
        for g in wA:
            qm.add(g, P.wt_load - 8, P.wt_load)
        for g in wB:
            qm.add(g, wb - 6, wb - 1)
        for g in wC:
            qm.add(g, wb + 1, wb + 30)
        G, Gld = [None] * 8, [None] * 8

        def stat_load(ti):
            so = s.sreg()
            row0 = 64 * (ti & 3) + 32 * (ti >> 2)
            d, ld = s.poll_issue(vROW16, so, 4, 'stat')
            G[ti], Gld[ti] = d, ld
            return [I('s_add_u32', so, sST, row0 * 16), ld]
        sST = s.sreg('st')
        qm.addeach([I('s_lshl_b32', sST, mt, 12), I('s_add_u32', sST, sST, STATS)], P.stat_load - 4, P.stat_load)
        for ti in range(4):
            qm.addeach(stat_load(ti), P.stat_load, P.stat_load + 6)
        for g in wF:
            qm.add(g, 150, 156)
        BF = {}

        def read2(u, k):
            b = s.v('bf', 4)
            w, off = xaddr((8 + u) % 4, (k >> 2) * 4096)
            BF[(u, k)] = b
            return I('ds_read_b128', b, vB[w][k & 3], mods=f'offset:{off}')
        qr.add([WAIT(stok[8]), I('s_barrier')], 155, 155)
        for k in range(4):
            qr.add(read2(0, k), 155, 156 + (k >> 1))
        o += weave(beats, [qr, qd, qm, qc], cap=P.cap)
        assert not qr.items and not qd.items and not qm.items, (len(qr.items), len(qd.items), len(qm.items))
        print('const slots left after first pass:', sum(i.cost for i in qc.items), file=sys.stderr)
        o += drain([qc])
        o += flat(s.stamp(3))
        qr, qd, qe, qm = Queue('rd'), Queue('dma'), Queue('epi'), Queue('misc')
        beats = []
        CA = s.v('csa', 4)
        MB = [s.v('mb', 4), s.v('mb', 4)]
        pre = []
        for k in range(1, 4):
            pre += [I('v_mov_b32', CA[k], 0), I('v_mov_b32', MB[0][k], 0), I('v_mov_b32', MB[1][k], 0)]
        mU, mH = s.sreg('mu', 2), s.sreg('mh', 2)
        c0, c1, c2 = s.v(), s.v(), s.v()
        pre += [I('s_mov_b32', mU[0], 0xffff0000), I('s_mov_b32', mU[1], 0xffff0000), I('s_mov_b32', mH[0], 0), I('s_mov_b32', mH[1], -1)]
        qe.addeach(pre, 0, 3)
        qe.addeach([I('v_cndmask_b32', c0, CS[0], CS[1], mU), I('v_cvt_pk_bf16_f32', c1, c0, c0), I('v_and_b32', c2, 0xffff0000, c1),
                    I('v_sub_f32', c0, c0, c2), I('v_cvt_pk_bf16_f32', c0, c0, c0), I('v_cndmask_b32', CA[0], c1, c0, mH)], 1, 4)
        sHS = s.sreg('hs')
        t = s.sreg()
        qm.addeach([I('s_mul_i32', sHS, mt, 8 * 112), I('s_lshl_b32', t, nt, 2), I('s_add_u32', sHS, sHS, t),
                    I('s_add_u32', sHS, sHS, s.sW), I('s_lshl_b32', sHS, sHS, 10), I('s_add_u32', sHS, sHS, HH)], 0, 8)
        sFE = s.sreg('fe')
        t2 = s.sreg()
        qm.addeach([I('s_lshl_b32', sFE, mt, 2), I('s_lshr_b32', t2, s.sXCD, 1), I('s_add_u32', sFE, sFE, t2), I('s_lshl_b32', sFE, sFE, 3),
                    I('s_add_u32', sFE, sFE, s.sCT), I('s_lshl_b32', sFE, sFE, 2), I('s_add_u32', sFE, sFE, s.sW),
                    I('s_lshl_b32', sFE, sFE, 2), I('s_add_u32', sFE, sFE, FE)], 8, 40)
        s.sFE = sFE
        ncorr = [0]
        hst = {}

        def corr(ti, at):
            mb = MB[ncorr[0] & 1]
            ncorr[0] += 1
            qe.add(s.poll_check(G[ti], Gld[ti]), max(0, at - 3), at - 2)
            qe.add(I('v_mov_b32', mb[0], G[ti][0]), max(0, at - 3), at - 2)
            return [I('v_mfma_f32_32x32x16_bf16', acc[ti], CA, mb, acc[ti])]

        def epi(ti, t0, t1, q):
            so = s.sreg()
            tile = 2 * (ti & 3) + (ti >> 2)
            q.add(I('s_add_u32', so, sHS, tile * 112 * 1024), t0, t1)
            e, st = s.glu_epi(acc[ti], G[ti], so)
            q.addeach(e, t0, t1)
            hst[ti] = st
        qe2 = Queue('epi2')
        qm.addeach(stat_load(4), 1, 6)
        start = {}
        for u in range(4):
            start[u] = len(beats)
            for k in range(32):
                bi = len(beats)
                beats.append([I('v_mfma_f32_32x32x16_bf16', acc[4 + u], AF[k], BF[(u, k)], acc[4 + u] if k else 0)])
                if k + 4 < 32:
                    qr.add(read2(u, k + 4), bi, bi)
                elif u < 3:
                    if k == 29:
                        last_reads = [x.insts[0] for x in qr.items[-2:]]
                        qr.add([WAIT(stok[9 + u], *last_reads), I('s_barrier')], bi, bi)
                        qr.add(read2(u + 1, 0), bi, bi)
                        qr.add(read2(u + 1, 1), bi, bi)
                        nb = bi
                    elif k > 29:
                        qr.add(read2(u + 1, k - 28), bi, bi)
                if u == 0 and k in (6, 8, 10, 12):
                    ti = (k - 6) // 2
                    beats.append(corr(ti, len(beats)))
                    epi(ti, len(beats) + 2, P.epi_dead[ti], qe2)
            beats.append(corr(4 + u, len(beats)))
            if u < 3:
                epi(4 + u, len(beats) + 2, len(beats) + 60, qe2)
                qm.addeach(stat_load(5 + u), start[u] + 4, start[u] + 12)
            if u == 0:
                pass
            gs = []
            if u < 2:
                gs += stage_dma(10 + u)
            gs += s.wd_dma(2 * u) + s.wd_dma(2 * u + 1)
            t0 = start[u] - (3 if u else 0)
            for n, g in enumerate(gs):
                qd.add(g, t0 + (n * 26) // len(gs), t0 + 30)
        qm.add([WAIT(*[hst[k] for k in range(4)]), s.flag_store(sFE)], P.eflag, P.eflag)
        qm.sort()
        qp = Queue('poll')
        pa, pb = s.yw_poll()
        for g in pa:
            qp.add(g, P.poll_yw - 6, P.poll_yw)
        ea, eb = s.hflag_poll(FE)
        for g in ea:
            qp.add(g, P.poll_e - 6, P.poll_e)
        for g in pb:
            qp.add(g, P.chk_yw, P.chk_yw + 18)
        o += weave(beats, [qr, qe, qd, qm, qe2, qp], cap=P.cap)
        o += drain([qr, qe, qd, qm, qe2, qp])
        o += flat(s.stamp(4))
        q3 = Queue()
        epi(7, 0, 0, q3)
        extra = [it.insts for it in q3.items]
        sFL = s.sreg()
        late = [I('s_add_u32', sFL, sFE, FL - FE), WAIT(*[hst[k] for k in range(4, 8)]), s.flag_store(sFL)]
        o += s.tail(extra, eb, late)
        return o

    def helper_path(s):
        o = []
        a = o.append
        s.wdtok, s.hso, s.hfrag, s.vF28 = {}, {}, {}, None
        flat = lambda gs: [i for g in gs for i in (g if isinstance(g, list) else [g])]
        a(I('label', 'L_helper'))
        t4, bh, rb, t = s.sreg('t4'), s.sreg('bh'), s.sreg('rb'), s.sreg()
        hid = s.sreg('hid')
        a(I('s_lshl_b32', hid, s.sXCD, 2))
        a(I('s_add_u32', hid, hid, s.sQ))
        a(I('s_lshr_b32', t4, hid, 1))
        a(I('s_and_b32', bh, hid, 1))
        a(I('s_lshl_b32', rb, t4, 7))
        a(I('s_lshl_b32', t, bh, 4))
        a(I('s_add_u32', rb, rb, t))
        a(I('s_lshl_b32', t, s.sW, 2))
        a(I('s_add_u32', rb, rb, t))
        rbb, lx = s.sreg(), s.sreg('lx')
        a(I('s_lshl_b32', rbb, rb, 10))
        a(I('s_lshl_b32', lx, s.sW, 14))
        a(WAIT(*s.kloads))
        xd = []
        groups = []
        for rho in range(16):
            bb, i = rho >> 2, rho & 3
            vo, so = s.v(), s.sreg()
            g = [I('v_xor_b32', vo, rho * 16, s.vL16), I('s_add_u32', so, rbb, (bb + 32 * i) * 1024 - i * 1024)]
            if i == 0:
                g.append(I('s_add_u32', 'm0', lx, bb * 4096))
            d = I('buffer_load_dwordx4', vo, s.dX, so, mods=f'offen offset:{i * 1024} lds')
            g.append(d)
            xd.append(d)
            groups.append(g)
        o += flat(groups[:11])
        o += s.after_kernarg()
        if P.diag:
            o += [I('v_writelane_b32', s.vST, s.diag_regs[0][0], 62), I('v_writelane_b32', s.vST, s.diag_regs[1][0], 0)]
        k1, q, fk, fq4 = s.v(), s.v(), s.v(), s.v()
        a(I('v_and_b32', k1, 15, s.vL))
        a(I('v_lshrrev_b32', q, 4, s.vL))
        a(I('v_cvt_f32_u32', fk, k1))
        a(I('v_cvt_f32_u32', fq4, q))
        a(I('v_mul_f32', fq4, 4.0, fq4))
        m0_, m8 = s.sreg('m0', 2), s.sreg('m8', 2)
        a(I('v_cmp_eq_u32', m0_, 0, k1))
        a(I('v_cmp_lt_u32', m8, 7, k1))
        BC, BS = s.v('bc', 4), s.v('bs', 4)
        st, ba, st2, ba2, z = s.v(), s.v(), s.v(), s.v(), s.v()
        a(I('v_mul_f32', st, lit(1 / 32), fk))
        a(I('v_mul_f32', ba, st, fq4))
        a(I('v_mov_b32', z, 0.5))
        a(I('v_cndmask_b32', st2, st, z, m0_))
        a(I('v_mov_b32', z, lit(0.25)))
        a(I('v_cndmask_b32', z, z, 0, m0_))
        a(I('v_fma_f32', ba2, st2, fq4, z))
        for (stp, bas, dst) in ((st, ba, BC), (st2, ba2, BS)):
            for j in range(4):
                cs = []
                for e in range(2):
                    k = (0, 2, 16, 18)[j] + e
                    p, c = s.v(), s.v()
                    if k:
                        a(I('v_fmamk_f32', p, stp, lit(k), bas))
                    else:
                        p = bas
                    a(I('v_cos_f32', c, p))
                    cs.append(c)
                a(I('v_cvt_pk_bf16_f32', dst[j], cs[0], cs[1]))
        TC, TS = s.v('tc', 4), s.v('ts', 4)
        st, ba = s.v(), s.v()
        a(I('v_mul_f32', st, lit(1 / 512), fk))
        a(I('v_mul_f32', ba, st, fq4))
        for r in range(4):
            p = s.v()
            if r:
                a(I('v_fmamk_f32', p, st, lit(r), ba))
            else:
                p = ba
            a(I('v_cos_f32', TC[r], p))
            a(I('v_sin_f32', TS[r], p))
        ARE, AIM, SRE, SIM = s.v('are', 4), s.v('aim', 4), s.v('sre', 4), s.v('sim', 4)
        st, ba, sg = s.v(), s.v(), s.v()
        a(I('v_mul_f32', st, lit(1 / 16), fk))
        a(I('v_mul_f32', ba, st, fq4))
        a(I('v_mov_b32', z, -1.0))
        a(I('v_cndmask_b32', sg, 1.0, z, m8))
        for r in range(4):
            g, c, sn = s.sincos(st, r, ba)
            o += g
            c2, s2 = s.v(), s.v()
            a(I('v_cvt_pk_bf16_f32', ARE[r], c, sn))
            a(I('v_mul_f32', c2, sg, c))
            a(I('v_mul_f32', s2, sg, sn))
            a(I('v_cvt_pk_bf16_f32', AIM[r], neg(s2), c2))
        st, ba, sh, kk = s.v(), s.v(), s.v(), s.v()
        a(I('v_lshlrev_b32', kk, 5, k1))
        a(I('v_add_u32', z, -240, kk))
        a(I('v_cndmask_b32', kk, kk, z, m8))
        vCSP = s.v('csp')
        a(I('v_mov_b32', sh, 256))
        a(I('v_cndmask_b32', kk, kk, sh, m0_))
        a(I('v_cvt_f32_u32', st, kk))
        a(I('v_mul_f32', st, lit(1 / 512), st))
        a(I('v_mul_f32', ba, st, fq4))
        a(I('v_cndmask_b32', sh, 0, 16, m8))
        for r in range(4):
            g, c, sn = s.sincos(st, r, ba)
            o += g
            a(I('v_cvt_pk_bf16_f32', c, c, 0))
            a(I('v_cvt_pk_bf16_f32', sn, neg(sn), 0))
            a(I('v_lshlrev_b32', SRE[r], sh, c))
            a(I('v_lshlrev_b32', SIM[r], sh, sn))
        ONE = s.v('one', 4)
        for k in range(4):
            a(I('v_mov_b32', ONE[k], 0x3f803f80))
        o += flat(groups[11:])
        vS = [s.v(f'vs{k}') for k in range(4)]
        x, y = s.v(), s.v()
        a(I('v_xor_b32', x, q, k1))
        a(I('v_lshlrev_b32', x, 4, x))
        a(I('v_lshl_add_u32', x, k1, 10, x))
        a(I('v_add_u32', vS[0], lx, x))
        for k in range(1, 4):
            a(I('v_xor_b32', vS[k], 64 * k, vS[0]))
        vT = s.v('vt')
        a(I('v_lshlrev_b32', vT, 3, s.vL))
        a(I('v_add_u32', vT, lx, vT))
        tg = s.tag_setup()
        wA, wB, wtok, wC, wF = s.wt_job()
        o += flat(s.stamp(1))
        a(WAIT(s.ldE))
        o += tg
        a(WAIT(*xd))
        o += flat(s.stamp(2))
        o += flat(wA)
        it = []
        DS, DQ = s.v('dsum', 4), s.v('dsq', 4)
        for ks in range(16):
            f = s.v('xf', 4)
            it.append(I('ds_read_b128', f, vS[ks & 3], mods=f'offset:{(ks >> 2) * 256}'))
            it.append(I('v_mfma_f32_16x16x32_bf16', DS, f, ONE, DS if ks else 0))
            it.append(I('v_mfma_f32_16x16x32_bf16', DQ, f, f, DQ if ks else 0))
        mk = [s.sreg('mk', 2) for _ in range(3)]
        l3 = s.v()
        it.append(I('v_and_b32', l3, 3, s.vL))
        for k in range(3):
            it.append(I('v_cmp_eq_u32', mk[k], k + 1, l3))
        sm, sq = s.v(), s.v()
        it.append(I('v_cndmask_b32', sm, DS[0], DS[1], mk[0]))
        it.append(I('v_cndmask_b32', sq, DQ[0], DQ[1], mk[0]))
        for k in (1, 2):
            it.append(I('v_cndmask_b32', sm, sm, DS[k + 1], mk[k]))
            it.append(I('v_cndmask_b32', sq, sq, DQ[k + 1], mk[k]))
        GR = s.v('gr', 4)
        vR, nm, var, hi = s.v('vr'), s.v(), s.v(), s.v()
        it.append(I('v_mul_f32', nm, lit(-1 / 512), sm))
        it.append(I('v_mul_f32', var, lit(1 / 512), sq))
        it.append(I('v_fma_f32', var, neg(nm), nm, var))
        it.append(I('v_max_f32', var, 0, var))
        it.append(I('v_add_f32', var, lit(1e-5), var))
        it.append(I('v_rsq_f32', vR, var))
        it.append(I('v_sqrt_f32', GR[2], var))
        it.append(I('v_mul_f32', GR[1], lit(-LOG2E), vR))
        it.append(I('v_cvt_pk_bf16_f32', hi, nm, nm))
        it.append(I('v_and_b32', hi, 0xffff0000, hi))
        lo = s.v()
        it.append(I('v_sub_f32', lo, nm, hi))
        it.append(I('v_cvt_pk_bf16_f32', GR[0], hi, lo))
        it.append(I('v_mov_b32', GR[3], s.sTAG))
        va, dg, so = s.v(), s.v(), s.sreg()
        it.append(I('v_bfe_u32', dg, s.vL, 2, 2))
        it.append(I('v_lshl_add_u32', va, l3, 5, dg))
        it.append(I('v_lshlrev_b32', va, 4, va))
        it.append(I('v_xor_b32', dg, dg, q))
        it.append(I('v_min_u32', dg, 1, dg))
        it.append(I('v_lshl_add_u32', va, dg, 30, va))
        it.append(I('s_lshl_b32', so, rb, 4))
        it.append(I('s_add_u32', so, so, STATS))
        it.append(I('buffer_store_dwordx4', GR, va, s.dWS, so, mods='offen sc1'))
        sR = [s.sreg(f'r{k}') for k in range(16)]
        for rho in range(16):
            it.append(I('v_readlane_b32', sR[rho], vR, 20 * (rho >> 2) + (rho & 3)))
        sc, tt = listsched(it)
        print('helper stats model cycles', tt, file=sys.stderr)
        o += sc
        o += flat(s.stamp(3))
        tw, tso = s.v(), s.sreg()
        a(I('v_lshlrev_b32', tw, 7, s.vL))
        a(I('s_lshl_b32', tso, hid, 2))
        a(I('s_add_u32', tso, tso, s.sW))
        a(I('s_mul_i32', tso, tso, 14336))
        for k in range(2):
            a(I('buffer_load_dword', s.v(), tw, s.dWD, tso, mods='offen'))
            if k == 0:
                a(I('s_add_u32', tso, tso, 6144))
        YB = 2 * SLOT
        vW = [s.v(f'vw{r}') for r in range(4)]
        mq2 = s.sreg('mq2', 2)
        cc, c15, ub = s.v(), s.v(), s.sreg('ub')
        a(I('v_cmp_lt_u32', mq2, 1, q))
        a(I('v_lshl_add_u32', cc, q, 7, k1))
        a(I('v_sub_u32', z, 512, cc))
        a(I('v_cndmask_b32', cc, cc, z, mq2))
        a(I('v_and_b32', c15, 15, cc))
        a(I('s_and_b32', ub, s.sW, 1))
        a(I('s_lshl_b32', ub, ub, 3))
        a(I('s_lshr_b32', t, s.sW, 1))
        a(I('s_lshl_b32', t, t, 2))
        a(I('s_add_u32', ub, ub, t))
        a(I('v_xor_b32', c15, ub, c15))
        a(I('v_lshlrev_b32', c15, 4, c15))
        a(I('v_lshl_add_u32', cc, cc, 8, c15))
        a(I('v_add_u32', cc, YB, cc))
        stp, dum = s.v(), s.v()
        a(I('v_mov_b32', z, -8192))
        a(I('v_mov_b32', stp, 8192))
        a(I('v_cndmask_b32', stp, stp, z, mq2))
        a(I('v_add_u32', dum, 4 * SLOT + 16384, s.vL16))
        for r in range(4):
            if r:
                a(I('v_add_u32', cc, cc, stp))
            a(I('v_cndmask_b32', vW[r], cc, dum, m0_))
        a(I('v_lshlrev_b32', x, 7, q))
        a(I('v_add_u32', z, -240, x))
        a(I('v_cndmask_b32', x, x, z, mq2))
        a(I('v_lshlrev_b32', x, 8, x))
        a(I('v_lshl_add_u32', x, k1, 2, x))
        a(I('s_lshl_b32', t, ub, 4))
        a(I('s_add_u32', t, t, YB))
        a(I('v_add_u32', vCSP, t, x))
        it = []
        SP = s.v('sp', 4)
        it += [I('v_mov_b32', SP[k], 0) for k in range(4)]
        ywr = []
        for bb in range(4):
            OUT = [s.v('yo', 4) for r in range(4)]
            for i in range(4):
                rho = 4 * bb + i
                ad, X = s.v(), s.v('xa', 4)
                DR, DI, E1, E2, PB = s.v('dr', 4), s.v('di', 4), s.v('e1', 4), s.v('e2', 4), s.v('pb', 4)
                it.append(I('v_xor_b32', ad, rho * 16, vT))
                it.append(I('ds_read_b64_tr_b16', X[0:2], ad, mods=f'offset:{rho * 1024}'))
                it.append(I('ds_read_b64_tr_b16', X[2:4], ad, mods=f'offset:{rho * 1024 + 512}'))
                it.append(I('v_mfma_f32_16x16x32_bf16', DR, X, BC, 0))
                it.append(I('v_mfma_f32_16x16x32_bf16', DI, X, BS, 0))
                for r in range(4):
                    c, sn, tr_, ti_ = s.v(), s.v(), s.v(), s.v()
                    it.append(I('v_mul_f32', c, sR[rho], TC[r]))
                    it.append(I('v_mul_f32', sn, sR[rho], TS[r]))
                    it.append(I('v_mul_f32', tr_, DR[r], c))
                    it.append(I('v_mul_f32', ti_, DI[r], c))
                    it.append(I('v_fmac_f32', tr_, DI[r], sn))
                    it.append(I('v_fma_f32', ti_, neg(DR[r]), sn, ti_))
                    it.append(I('v_cvt_pk_bf16_f32', PB[r], tr_, ti_))
                    if rho:
                        it.append(I('v_mov_b32_dpp', SP[r], PB[r], mods=f'row_shr:{rho} row_mask:0xf bank_mask:0xf'))
                    else:
                        it.append(I('v_mov_b32', SP[r], PB[r]))
                it.append(I('v_mfma_f32_16x16x32_bf16', E1, ARE, PB, 0))
                it.append(I('v_mfma_f32_16x16x32_bf16', E2, AIM, PB, 0))
                for r in range(4):
                    it.append(I('v_cvt_pk_bf16_f32', OUT[r][i], E1[r], E2[r]))
            for r in range(4):
                ad = s.v()
                if bb:
                    it.append(I('v_xor_b32', ad, bb * 16, vW[r]))
                else:
                    ad = vW[r]
                w_ = I('ds_write_b128', ad, OUT[r])
                ywr.append(w_)
                it.append(w_)
        E1, E2 = s.v('e1', 4), s.v('e2', 4)
        it.append(I('v_mfma_f32_16x16x32_bf16', E1, SRE, SP, 0))
        it.append(I('v_mfma_f32_16x16x32_bf16', E2, SIM, SP, 0))
        for r in range(4):
            pk = s.v()
            it.append(I('v_cvt_pk_bf16_f32', pk, E1[r], E2[r]))
            w_ = I('ds_write_b32', vCSP, pk, mods=f'offset:{r * 8192}')
            ywr.append(w_)
            it.append(w_)
        sc, tt = listsched(it, inorder=P.fft_win)
        print('helper fft model cycles', tt, file=sys.stderr)
        o += sc
        o += flat(wB)
        a(WAIT(*ywr, *wtok))
        a(I('s_barrier'))
        o += flat(s.stamp(4))
        vRd = [s.v() for _ in range(4)]
        a(I('v_xor_b32', x, q, k1))
        a(I('v_lshlrev_b32', x, 4, x))
        a(I('v_lshl_add_u32', x, q, 8, x))
        a(I('s_add_u32', t, lx, YB))
        a(I('v_add_u32', vRd[0], t, x))
        for e in range(1, 4):
            a(I('v_xor_b32', y, 64 * e, vRd[0]))
            a(I('v_add_u32', vRd[e], 1024 * e, y))
        vGo, sy = s.v(), s.sreg()
        a(I('v_bfe_u32', x, s.vL, 3, 1))
        a(I('v_lshlrev_b32', x, 10, x))
        a(I('v_lshl_add_u32', x, q, 13, x))
        a(I('v_and_b32', y, 7, s.vL))
        a(I('v_lshl_add_u32', vGo, y, 4, x))
        a(I('s_lshl_b32', sy, s.sW, 19))
        a(I('s_lshr_b32', t, t4, 2))
        a(I('s_lshl_b32', t, t, 11))
        a(I('s_add_u32', sy, sy, t))
        a(I('s_and_b32', t, t4, 3))
        a(I('s_lshl_b32', t, t, 8))
        a(I('s_add_u32', sy, sy, t))
        a(I('s_lshl_b32', t, bh, 7))
        a(I('s_add_u32', sy, sy, t))
        it = []
        yst = []
        lastrd = []
        for e in range(16):
            d, so = s.v('yb', 4), s.sreg()
            rd = I('ds_read_b128', d, vRd[e & 3], mods=f'offset:{(e >> 2) * 4096}')
            lastrd.append(rd)
            it.append(rd)
            it.append(I('s_add_u32', so, sy, YT + e * 4 * 8192))
            st_ = I('buffer_store_dwordx4', d, vGo, s.dWS, so, mods='offen sc1')
            yst.append(st_)
            it.append(st_)
        it += wC
        sc, _ = listsched(it)
        o += sc
        o += flat(s.stamp(5))
        c1 = s.own_xor() + s.lane_floats() + s.consts_p2()
        o += c1[:260]
        fo = s.sreg()
        a(I('s_lshl_b32', fo, s.sW, 5))
        a(I('s_add_u32', fo, fo, hid))
        a(I('s_lshl_b32', fo, fo, 2))
        a(I('s_add_u32', fo, fo, FY))
        a(WAIT(*yst))
        a(s.flag_store(fo))
        o += flat(wF)
        a(I('s_barrier'))
        o += c1[260:]
        o += flat(s.tail_setup())
        gs = []
        for jp in range(8):
            gs += s.wd_dma(jp)
        cf = s.consts_finv()
        per = len(cf) // len(gs)
        for n, g in enumerate(gs):
            o += g
            o += cf[n * per:(n + 1) * per]
        o += cf[len(gs) * per:]
        pa, pb = s.yw_poll()
        ea, eb = s.hflag_poll(FE)
        o += flat(pa) + flat(ea) + flat(pb)
        o += flat(s.stamp(6))
        o += s.tail([], eb, [])
        return o

    def windowed(s, items, win):
        out = []
        tot = 0
        k = 0
        n = len(items)
        while k < n:
            sc, t = listsched(items[k:k + win])
            out += sc
            tot += t
            k += win
        print('windowed model cycles', tot, file=sys.stderr)
        return out

    def tail(s, extra, echeck, late):
        o = []
        a = o.append
        flat = lambda gs: [i for g in gs for i in (g if isinstance(g, list) else [g])]
        if P.stop <= 1:
            o += flat(extra) + late + flat(echeck)
            return o + s.finish()
        s.sHB2 = s.sreg('hb2')
        it = []
        it.append([I('s_barrier')])
        it += s.wd_dma(8)
        it += echeck
        for j in range(P.nh_first):
            it.append((s.h_load(0, j), 100 + 64 * j))
        it += extra
        M = 'v_mfma_f32_16x16x32_bf16'
        D1 = [[s.v('d1', 4), s.v('d1', 4)] for _ in range(2)]
        for tb in range(2):
            for ks in range(4):
                it.append(I(M, D1[tb][0], s.Y[tb][ks], s.C1A[ks], D1[tb][0] if ks else 0))
                it.append(I(M, D1[tb][1], s.Y[tb][ks], s.C1B[ks], D1[tb][1] if ks else 0))
        for j in range(P.nh_first, 28):
            it.append((s.h_load(0, j), 100 + 64 * j))
        WR = [[s.v('wr') for _ in range(4)] for _ in range(2)]
        for m in range(2):
            for r in range(4):
                it.append(I('v_lshlrev_b32', WR[m][r], 16, s.WF[m][r]))
                it.append(I('v_and_b32', s.WF[m][r], 0xffff0000, s.WF[m][r]))

        def cmul(dr, di, c, sn, conj):
            x, y = s.v(), s.v()
            g = [I('v_mul_f32', x, dr, c), I('v_mul_f32', y, di, c)]
            if conj:
                g += [I('v_fmac_f32', x, di, sn), I('v_fma_f32', y, neg(dr), sn, y)]
            else:
                g += [I('v_fma_f32', x, neg(di), sn, x), I('v_fmac_f32', y, dr, sn)]
            return g, x, y
        PP, QQ = [s.v('p', 4) for _ in range(2)], [s.v('q', 4) for _ in range(2)]
        for tb in range(2):
            for r in range(4):
                g, x, y = cmul(D1[tb][0][r], D1[tb][1][r], *s.T1[tb][r], True)
                it += g
                it.append(I('v_cvt_pk_bf16_f32', PP[tb][r], x, y))
                it.append(I('v_cvt_pk_bf16_f32', QQ[tb][r], y, neg(x)))
        D2 = [[s.v('d2', 4), s.v('d2', 4)] for _ in range(2)]
        for tb in range(2):
            for m in range(2):
                it.append(I(M, D2[m][0], s.C2[m][tb], PP[tb], D2[m][0] if tb else 0))
                it.append(I(M, D2[m][1], s.C2[m][tb], QQ[tb], D2[m][1] if tb else 0))
        PP, QQ = [s.v('p', 4) for _ in range(2)], [s.v('q', 4) for _ in range(2)]
        for m in range(2):
            for r in range(4):
                g, x, y = cmul(D2[m][0][r], D2[m][1][r], WR[m][r], s.WF[m][r], False)
                it += g
                it.append(I('v_cvt_pk_bf16_f32', PP[m][r], x, neg(y)))
                it.append(I('v_cvt_pk_bf16_f32', QQ[m][r], y, x))
        D3 = [[s.v('d3', 4), s.v('d3', 4)] for _ in range(2)]
        for m in range(2):
            for n in range(2):
                it.append(I(M, D3[n][0], PP[m], s.C2[n][m], D3[n][0] if m else 0))
                it.append(I(M, D3[n][1], QQ[m], s.C2[n][m], D3[n][1] if m else 0))
        XB = 3 * SLOT + 4096
        vXW, vXR = s.v('xw'), s.v('xr')
        t = s.sreg()
        it.append(I('s_add_u32', t, s.sLW, XB))
        it.append(I('v_add_u32', vXW, t, s.vL16))
        it.append(I('v_add_u32', vXR, XB, s.vL16))
        ws = []
        for n in range(2):
            U = s.v('u', 4)
            for r in range(4):
                g, x, y = cmul(D3[n][0][r], D3[n][1][r], *s.T3[n][r], False)
                it += g
                it.append(I('v_cvt_pk_bf16_f32', U[r], x, neg(y)))
            w_ = I('ds_write_b128', vXW, U, mods=f'offset:{n * 1024}')
            ws.append(w_)
            it.append(w_)
        it.append([WAIT(*ws), I('s_barrier')])
        D4 = [[s.v('d4', 4), s.v('d4', 4)] for _ in range(2)]
        for ks in range(4):
            for n in range(2):
                U = s.v('ux', 4)
                it.append(I('ds_read_b128', U, vXR, mods=f'offset:{ks * 8192 + n * 1024}'))
                it.append(I(M, D4[n][0], U, s.C1A[ks], D4[n][0] if ks else 0))
                it.append(I(M, D4[n][1], U, s.C1B[ks], D4[n][1] if ks else 0))
        vZ, x, y = s.v('vz'), s.v(), s.v()
        it.append(I('v_and_b32', x, 15, s.vL))
        it.append(I('v_lshrrev_b32', y, 4, s.vL))
        it.append(I('v_lshlrev_b32', y, 4, y))
        it.append(I('v_lshl_add_u32', vZ, x, 6, y))
        zs, w1k = s.sreg(), s.sreg('w1k')
        it.append(I('s_lshl_b32', w1k, s.sW, 10))
        it.append(I('s_add_u32', zs, w1k, s.sCOL))
        zst = []
        for part in range(2):
            Z, so = s.v('z', 4), s.sreg()
            for n in range(2):
                for e in range(2):
                    it.append(I('v_cvt_pk_bf16_f32', Z[2 * n + e], D4[n][part][2 * e], D4[n][part][2 * e + 1]))
            it.append(I('s_add_u32', so, zs, ZT + part * 4096))
            st = I('buffer_store_dwordx4', Z, vZ, s.dWS, so, mods='offen sc1')
            zst.append(st)
            it.append(st)
        ta, vWA = s.tr_addr(True)
        it += ta
        win = {0: vWA}

        def wa(ad):
            w = ad >> 16
            g = []
            if w not in win:
                r = (s.v('tra'), s.v('tra'))
                g = [I('v_add_u32', r[k], w * 65536, vWA[k]) for k in range(2)]
                win[w] = r
            return g, win[w], ad & 0xffff
        WD = {}
        wdrd = {}

        def wd_read(j):
            g, r, off = wa(s.wd_unit(j >> 1) + (j & 1) * 2048)
            if (j & 1) == 0:
                g = g + [WAIT(s.wdtok[j >> 1])]
            out = [g] if g else []
            for nq in range(2):
                d = s.v('wd', 4, 'any')
                WD[(j, nq)] = d
                for e in range(2):
                    rd = I('ds_read_b64_tr_b16', d[2 * e:2 * e + 2], r[nq], mods=f'offset:{off + e * 1024}')
                    out.append([rd])
                    wdrd[j] = rd
            return out
        sc, tt = listsched(it)
        print('P2 model cycles', tt, file=sys.stderr)
        if late:
            pos = min(len(sc), P.lflag // 4)
            while sc[pos - 1].op in ('v_cmp_ne_u32', 's_add_u32', 's_cbranch_vccnz', 'wait') or sc[pos].op in ('label',):
                pos += 1
            sc = sc[:pos] + late + sc[pos:]
        o += sc
        o += flat(s.stamp(8))
        zf = s.sreg()
        zflag = [I('s_lshl_b32', zf, s.WG, 2), I('s_add_u32', zf, zf, w1k), I('s_add_u32', zf, zf, FZ)]
        if P.stop <= 2:
            o += zflag + [WAIT(*zst), s.flag_store(zf)]
            return o + s.finish()
        M32 = 'v_mfma_f32_32x32x16_bf16'
        o += flat(wd_read(0)) + flat(wd_read(1))
        OA = [[s.v(f'oa{sq}0', 16), s.v(f'oa{sq}1', 16, 'any')] for sq in range(2)]
        qr, qd, qm, qh = Queue('rd'), Queue('dma'), Queue('misc'), Queue('h')
        beats = []
        for j in range(28):
            for nq in range(2):
                beats.append([I(M32, OA[0][nq], WD[(j, nq)], s.hfrag[(0, j)], OA[0][nq] if j else 0)])
            if j + 2 < 28:
                jn = j + 2
                if (jn >> 1) >= 9 and (jn >> 1) not in s.wdtok:
                    raise RuntimeError
                for n, g in enumerate(wd_read(jn)):
                    qr.add(g, 2 * j, 2 * j + (n > 2))
            if (j & 1) and (j >> 1) + 9 < 14:
                gs = s.wd_dma((j >> 1) + 9)
                gs[2] = [WAIT(wdrd[j])] + gs[2]
                for g in gs:
                    qd.add(g, 2 * j + 1, 2 * j + 4)
        qm.addeach(zflag, 0, 4)
        qm.add(I('s_add_u32', s.sHB2, s.sHB, 112 * 1024), 0, 4)
        la, lb = s.hflag_poll(FL)
        ev = [(P.poll_l, la), (P.zflag, [[WAIT(*zst), s.flag_store(zf)]]), (P.chk_l, lb)]
        for tt, gs in sorted(ev, key=lambda e: e[0]):
            for g in gs:
                qm.add(g, max(0, tt - 2), tt)
        nh_early = min(28, P.nh_ring)
        for j in range(nh_early):
            qh.add(s.h_load(1, j), P.chk_l + 1 + (j * 3) // 4, 55)
        o += weave(beats, [qr, qm, qd, qh], cap=P.cap)
        o += drain([qr, qm, qd, qh])
        o += flat(s.stamp(9))
        vOW = [None] + [s.v('ow') for _ in range(3)]
        vXO, vXI = s.v('xo'), [None] + [s.v('xi') for _ in range(3)]
        setup = [I('v_add_u32', vXO, s.sLW, s.vL16), I('v_add_u32', vXO, 65536, vXO)]
        for v_ in range(1, 4):
            setup.append(I('v_xor_b32', vXI[v_], v_ * 8192, vXO))
        KSC = float(2048 * 512 // 2)

        def exchange(accs, box):
            wr, rd, add = [], [], []
            for v_ in range(1, 4):
                src = accs[v_ & 1]
                for e in range(2):
                    k = 8 * (v_ >> 1) + 4 * e
                    wr.append(I('ds_write_b128', vXO, src[k:k + 4], mods=f'offset:{box + (v_ - 1) * 2048 + e * 1024}'))
            for v_ in range(1, 4):
                for e in range(2):
                    d = s.v('xin', 4)
                    rd.append(I('ds_read_b128', d, vXI[v_], mods=f'offset:{box + (v_ - 1) * 2048 + e * 1024}'))
                    for k in range(4):
                        add.append(I('v_add_f32', accs[0][4 * e + k], accs[0][4 * e + k], d[k]))
            return wr, [WAIT(*wr), I('s_barrier')], rd, add
        sKS = s.sreg('ksc')

        def silu(acc):
            g = []
            T = s.v('sg', 8)
            for p in range(0, 8, 2):
                for k in (p, p + 1):
                    g.append(I('v_mul_f32', T[k], lit(-LOG2E), acc[k]))
                for k in (p, p + 1):
                    g.append(I('v_exp_f32', T[k], T[k]))
                for k in (p, p + 1):
                    g.append(I('v_fma_f32', T[k], T[k], sKS, sKS))
                for k in (p, p + 1):
                    g.append(I('v_rcp_f32', T[k], T[k]))
                for k in (p, p + 1):
                    g.append(I('v_mul_f32', T[k], T[k], acc[k]))
            return g, T
        qr, qd, qm, qh, qx = Queue('rd'), Queue('dma'), Queue('misc'), Queue('h'), Queue('x')
        beats = []
        for j in range(nh_early, 28):
            qh.add(s.h_load(1, j), max(0, 2 * (j - nh_early) + 1), max(0, 2 * j - 12))
        for j in range(28):
            for nq in range(2):
                beats.append([I(M32, OA[1][nq], WD[(j, nq)], s.hfrag[(1, j)], OA[1][nq] if j else 0)])
        qx.addeach(setup + [I('s_mov_b32', sKS, lit(KSC))], 0, 3)
        wr, bar, rd, add = exchange(OA[0], 0)
        qx.addeach(wr, 3, 16)
        qx.add(bar, 12, 18)
        qx.addeach(rd, 13, 22)
        qx.addeach(add, 18, 40)
        g, G0 = silu(OA[0][0])
        qx.addeach(g, 20, 54)
        zp, zo = s.sreg(), s.sreg()
        za = [I('s_lshr_b32', zp, s.sSB, 3), I('s_lshl_b32', zp, zp, 2), I('s_add_u32', zp, zp, s.sW), I('s_lshl_b32', zp, zp, 8),
              I('s_add_u32', zp, zp, FZ)]
        dz, lz = s.poll_issue(s.vL4, zp)
        qm.addeach(za + [lz], max(0, P.poll_z - 4), P.poll_z)
        vZD = [s.v('zd') for _ in range(4)]
        y = s.v()
        zb = [I('v_lshrrev_b32', y, 3, s.vL), I('v_lshl_add_u32', vZD[0], y, 12, s.vSW)]
        zb += [I('v_add_u32', vZD[i], i * (32768 - 1024), vZD[0]) for i in range(1, 4)]
        zb += [I('s_lshl_b32', zo, s.sW, 19), I('s_lshl_b32', t, s.sSB, 7), I('s_add_u32', zo, zo, t)]
        qm.addeach(zb, P.poll_z, P.chk_z - 1)
        tb_, vZA = s.tr_addr(False)
        qm.addeach(tb_, P.poll_z, P.chk_z - 1)
        vXO2, xs = s.v('xoff'), s.sreg('xs')
        x1, x2 = s.v(), s.v()
        xa = [I('v_and_b32', x1, 31, s.vL), I('v_lshrrev_b32', x2, 5, s.vL), I('v_lshlrev_b32', x2, 4, x2), I('v_lshl_add_u32', vXO2, x1, 10, x2),
              I('s_lshl_b32', xs, s.sSB, 16), I('s_add_u32', xs, xs, s.sCT128), I('s_lshl_b32', t, s.sOWN, 1), I('s_add_u32', xs, xs, t)]
        XS = [xs, s.sreg('xs2')]
        xa.append(I('s_add_u32', XS[1], xs, 32768))
        XV = [s.v('xv', 4), s.v('xv', 4)]
        xa += [I('buffer_load_dwordx4', XV[k], vXO2, s.dX, XS[k], mods='offen') for k in range(2)]
        qm.addeach(xa, P.poll_z, P.chk_z - 1)
        qm.add(s.poll_check(dz, lz), P.chk_z, P.chk_z)
        ztok = []
        for g_ in range(4):
            so = s.sreg()
            d = [I('buffer_load_dwordx4', vZD[i], s.dWS, so, mods=f'offen offset:{i * 1024} sc1 lds') for i in range(4)]
            qm.add(I('s_add_u32', so, zo, ZT + g_ * 32 * 4096), P.chk_z, 55)
            qm.add([I('s_add_u32', 'm0', s.sLW, (g_ >> 1) * SLOT + (g_ & 1) * 4096), d[0]], P.chk_z, 55)
            qm.addeach(d[1:], P.chk_z, 55)
            ztok.append(d[-1])
        ZF = {}

        def z_read(sq, j):
            out = []
            if sq == 0 and (j & 1) == 0:
                out.append([WAIT(ztok[j >> 1])])
            d = s.v('zf', 4, 'any')
            ZF[(sq, j)] = d
            off = (j >> 2) * SLOT + (j & 3) * 2048
            for e in range(2):
                out.append([I('ds_read_b64_tr_b16', d[2 * e:2 * e + 2], vZA[sq], mods=f'offset:{off + e * 1024}')])
            return out
        o += weave(beats, [qh, qm, qx], cap=P.cap)
        o += drain([qh, qm, qx])
        o += flat(s.stamp(10))
        o += flat(z_read(0, 0)) + flat(z_read(0, 1))
        SA = [[s.v(f'sa{sq}0', 16), s.v(f'sa{sq}1', 16, 'any')] for sq in range(2)]
        qr, qx, qy = Queue('rd'), Queue('x'), Queue('y')
        beats = []
        for n in range(16):
            sq, j = n >> 3, n & 7
            for nq in range(2):
                beats.append([I(M32, SA[sq][nq], s.FV[nq][j], ZF[(sq, j)], SA[sq][nq] if j else 0)])
            if n + 2 < 16:
                for g in z_read((n + 2) >> 3, (n + 2) & 7):
                    qr.add(g, 2 * n, 2 * n + 1)
        wr, bar, rd, add = exchange(OA[1], 32768 - 8192 + 8192)
        qx.addeach(wr, 2, 8)
        qx.add(bar, 7, 10)
        qx.addeach(rd, 8, 12)
        qx.addeach(add, 11, 22)
        g, G1 = silu(OA[1][0])
        XF = [s.v('xf', 8), s.v('xf', 8)]

        def xprep(k):
            g = [I('v_permlane32_swap_b32', XV[k][0], XV[k][2]), I('v_permlane32_swap_b32', XV[k][1], XV[k][3])]
            for e in range(4):
                g.append(I('v_lshlrev_b32', XF[k][2 * e], 16, XV[k][e]))
                g.append(I('v_and_b32', XF[k][2 * e + 1], 0xffff0000, XV[k][e]))
            return g
        vXO4, vXI4 = s.v('xo4'), [None] + [s.v('xi4') for _ in range(3)]
        qy.add(I('v_add_u32', vXO4, 65536, vXO), 0, 10)
        for v_ in range(1, 4):
            qy.add(I('v_add_u32', vXI4[v_], 65536, vXI[v_]), 0, 10)
        sav = (vXO, vXI)
        vXO, vXI = vXO4, vXI4
        wr2, bar2, rd2, add2 = exchange(SA[0], 0)
        vXO, vXI = sav
        qx.addeach(wr2, 18, 24)
        qx.add(bar2, 23, 26)
        qx.addeach(rd2, 24, 28)
        qy.addeach(g, 23, 10**9)
        o += weave(beats, [qr, qx, qy], cap=P.cap)
        o += flat(s.stamp(11))

        def final(k, Sacc, G):
            g = []
            O = s.v('out', 4)
            for e in range(8):
                g.append(I('v_fmac_f32', XF[k][e], Sacc[e], G[e]))
            for e in range(4):
                g.append(I('v_cvt_pk_bf16_f32', O[e], XF[k][2 * e], XF[k][2 * e + 1]))
            g += [I('v_permlane32_swap_b32', O[0], O[2]), I('v_permlane32_swap_b32', O[1], O[3])]
            g.append(I('buffer_store_dwordx4', O, vXO2, s.dO, XS[k], mods='offen'))
            return g
        it = [x_.insts for q_ in (qr, qx, qy) for x_ in q_.items]
        wr, bar, rd, add = exchange(SA[1], 0)
        it += wr + xprep(0) + xprep(1) + add2 + final(0, SA[0][0], G0) + [bar] + rd + add + final(1, SA[1][0], G1)
        sc, tt = listsched(it)
        print('final model cycles', tt, file=sys.stderr)
        o += sc
        eo = s.sreg()
        o += [I('s_or_b32', eo, s.WG, s.sW), I('s_cmp_eq_u32', eo, 0), I('s_cselect_b32', eo, 0, BIG), s.flag_store(eo)]
        return o + s.finish()

    def finish(s):
        o = []
        if P.diag:
            t = s.sreg('rt', 2)
            t2 = s.sreg('rt', 2)
            m, m2 = I('s_memrealtime', t), I('s_memtime', t2)
            so, x = s.sreg(), s.v()
            o += [I('s_waitcnt', mods='vmcnt(0)'), m, m2, WAIT(m, m2), I('v_writelane_b32', s.vST, t[0], 63), I('v_writelane_b32', s.vST, t2[0], 15),
                  I('s_lshl_b32', so, s.WG, 2), I('s_add_u32', so, so, s.sW), I('s_lshl_b32', so, so, 8), I('s_add_u32', so, so, STAMPS),
                  I('v_lshlrev_b32', x, 2, s.vL), I('buffer_store_dword', s.vST, x, s.dWS, so, mods='offen')]
        o.append(I('s_endpgm'))
        return o

    def build(s):
        pro = s.prologue()
        paths = []
        for fn in (s.gemm_path, s.helper_path):
            s.slow = []
            body = fn()
            paths.append((body, s.slow))
        shared = {}
        for i in pro:
            for d in i.defs:
                if isinstance(d, Sub) and not d.r.pinned:
                    shared[d.r.id] = d.r
        allocate(pro + [I('comment', 'x', extra_use=list(shared.values()))], s_reserved=range(0, 36))
        txt = []
        hv = ha = hs = 0
        for n, (body, slow) in enumerate(paths):
            check_def_before_use(pro + body)
            hi = allocate(pro + body, s_reserved=range(0, 36), verbose=True)
            hv, ha, hs = max(hv, hi['v']), max(ha, hi['a']), max(hs, hi['s'])
            full, nops = finalize(pro + body)
            print('path', n, 'instructions', len(full), 'hazard nops', nops, file=sys.stderr)
            if n:
                k = [i.op == 'label' and i.ops[0] == 'L_helper' for i in full].index(True)
                full = full[k:]
            txt.append(text(full))
            for sl in slow:
                txt.append(text(sl))
        hdr = open(__file__.rsplit('/', 1)[0] + '/header.txt').read()
        out = hdr + f'''; @launch grid=(256,1,1) block=(256,1,1) lds=163840
.amdgcn_target "amdgcn-amd-amdhsa--gfx950"
.text
.globl {KNAME}
.p2align 8
.type {KNAME},@function
{KNAME}:
''' + ''.join(txt) + f'''L_end:
  s_endpgm
L_codeend:
.section .rodata,"a"
.p2align 6
.amdhsa_kernel {KNAME}
  .amdhsa_next_free_vgpr 512
  .amdhsa_next_free_sgpr 102
  .amdhsa_accum_offset 256
  .amdhsa_group_segment_fixed_size 0
  .amdhsa_kernarg_size 80
  .amdhsa_user_sgpr_count 2
  .amdhsa_user_sgpr_kernarg_segment_ptr 1
  .amdhsa_system_sgpr_workgroup_id_x 1
.end_amdhsa_kernel
'''
        return out


P.wt_bar = 5
P.n1 = 8
P.fft_win = 90
P.nh_first = 4
P.epi_dead = (30, 44, 58, 70)
P.nh_ring = 14

if __name__ == '__main__':
    outp = sys.argv[1]
    for kv in sys.argv[2:]:
        k, v = kv.split('=')
        setattr(P, k, eval(v))
    open(outp, 'w').write(Gen().build())
```

```python
import struct
import sys
from asmlib import *

KNAME = 'recurrent_scan__spectral_gfnet__glu_gated_glu__prompt_kernel'

FW, FY, FE, FL, FZ = 0x1000, 0x2000, 0x3000, 0x4000, 0x5000
STATS, WT, YT, ZT, HH, STAMPS = 0x10000, 0x100000, 0x400000, 0x800000, 0x1000000, 0x1800000
WS_SIZE = 0x2000000
BIG = 0x40000000
TAGSTEP = 0x9E3779B9
LOG2E = 1.4426950408889634
SLOT = 32768


def fl(x):
    return struct.unpack('<I', struct.pack('<f', x))[0]


def lit(x):
    return hex(fl(x))


class P:
    diag = False
    stop = 99
    npre = 420
    wt_load = 45
    stat_load = 120
    eflag = 84
    poll_e = 112
    poll_yw = 88
    chk_yw = 112
    poll_l = 10
    chk_l = 34
    lflag = 1300
    zflag = 30
    poll_z = 10
    chk_z = 34
    cap = 6


class Gen:
    def __init__(s):
        s.slow = []
        s.lab = 0
        S = lambda n, pin: R(n, 's', pin=pin)
        s.KA = S(2, 0)
        s.WG = S(1, 2)
        s.dX, s.dWR, s.dWI, s.dWG, s.dWU, s.dWD, s.dO, s.dWS = [S(4, 4 + 4 * k) for k in range(8)]
        s.V0 = R(1, 'v', pin=0)
        s.nstamp = 0

    def sreg(s, name='s', n=1):
        return R(n, 's', name)

    def v(s, name='t', n=1, cls='v'):
        return R(n, cls, name)

    def stamp(s, k):
        if not P.diag:
            return []
        t = s.sreg('st', 2)
        m = I('s_memtime', t)
        return [[m, WAIT(m), I('v_writelane_b32', s.vST, t[0], k)]]

    def poll_issue(s, voff, soff, n=1, name='fl'):
        d = s.v(name, n)
        op = 'buffer_load_dword' + ('' if n == 1 else f'x{n}')
        return d, I(op, d, voff, s.dWS, soff, mods='offen sc1')

    def poll_check(s, d, ld):
        s.lab += 1
        a, b = f'L_poll{s.lab}', f'L_back{s.lab}'
        tagreg = d[d.n - 1]
        br = I('s_cbranch_vccnz', a, extra_use=[ld.ops[1], ld.ops[3], s.sCNT] if isinstance(ld.ops[3], Sub) else [ld.ops[1], s.sCNT])
        s.slow.append([I('label', a), I('s_mov_b32', s.sCNT, 0), I('label', a + 'x'),
                       I('s_sleep', 2),
                       I(ld.op, *ld.ops, mods=ld.mods), I('s_waitcnt', mods='vmcnt(0)'),
                       I('v_cmp_ne_u32', 'vcc', s.sTAG, tagreg), I('s_nop', 4),
                       I('s_cbranch_vccz', b),
                       I('s_add_u32', s.sCNT, s.sCNT, 1), I('s_cmp_lt_u32', s.sCNT, 0x8000),
                       I('s_cbranch_scc1', a + 'x'), I('s_branch', b)])
        return [I('v_cmp_ne_u32', 'vcc', s.sTAG, tagreg), br, I('label', b)]

    def flag_store(s, soff):
        return I('buffer_store_dword', s.vTAG, s.vM0, s.dWS, soff, mods='offen sc1')

    def prologue(s):
        o = []
        a = o.append
        a(I('s_cmp_ge_u32', s.WG, 256))
        a(I('s_cbranch_scc1', 'L_end'))
        lds = []
        for d, off in ((s.dX, 0), (s.dWG, 32), (s.dWU, 40), (s.dWS, 72), (s.dWR, 8), (s.dWI, 16), (s.dWD, 48), (s.dO, 56)):
            lds.append(I('s_load_dwordx2', d[0:2], s.KA, off))
        o += lds
        if P.diag:
            s.vST = s.v('stampv')
            t = s.sreg('rt', 2)
            t2 = s.sreg('rt2', 2)
            a(I('v_mov_b32', s.vST, 0))
            m = I('s_memrealtime', t)
            m2 = I('s_memtime', t2)
            o += [m, m2]
        for d, n in ((s.dX, 2097152), (s.dWG, 1835008), (s.dWU, 1835008), (s.dWS, WS_SIZE), (s.dWR, 1052672), (s.dWI, 1052672),
                     (s.dWD, 1835008), (s.dO, 2097152)):
            a(I('s_mov_b32', d[2], n))
            a(I('s_mov_b32', d[3], 0x20000))
        s.vL, s.sW = s.v('lane'), s.sreg('wave')
        t = s.v()
        a(I('v_lshrrev_b32', t, 6, s.V0))
        a(I('v_and_b32', s.vL, 63, s.V0))
        a(I('v_readfirstlane_b32', s.sW, t))
        s.sXCD, s.sIDX, s.sQ, s.sCT = s.sreg('xcd'), s.sreg('idx'), s.sreg('q'), s.sreg('ct')
        a(I('s_and_b32', s.sXCD, s.WG, 7))
        a(I('s_lshr_b32', s.sIDX, s.WG, 3))
        a(I('s_and_b32', s.sQ, s.sIDX, 3))
        a(I('s_lshr_b32', s.sCT, s.sIDX, 2))
        s.sLW = s.sreg('lw')
        a(I('s_lshl_b32', s.sLW, s.sW, 13))
        s.vL16 = s.v('l16')
        a(I('v_lshlrev_b32', s.vL16, 4, s.vL))
        s.sCNT = s.sreg('cnt')
        a(I('s_mov_b32', s.sCNT, 0))
        if P.probe:
            dB = R(4, 's', 'probe', pin=96)
            lb = I('s_load_dwordx2', dB[0:2], s.KA, P.probe_arg)
            o += [lb, I('s_mov_b32', dB[2], P.probe_size), I('s_mov_b32', dB[3], 0x20000), WAIT(lb)]
            pa, pd, ps = s.v(), s.v(), s.sreg()
            a(I('s_lshl_b32', ps, s.WG, 12))
            a(I('v_mov_b32', pa, ps))
            for k in range(P.probe):
                a(I('buffer_load_dword', pd, pa, dB, 0, mods='offen'))
                a(I('v_and_b32', pd, 0, pd))
                a(I('v_add3_u32', pa, pa, pd, 64))
                a(I('v_add_u32', pa, 64, pa))
        a(I('s_cmp_eq_u32', s.sCT, 7))
        a(I('s_cbranch_scc1', 'L_helper'))
        s.kloads = lds
        if P.diag:
            s.diag_regs = (m.ops[0], m2.ops[0])
        return o

    def after_kernarg(s):
        o = []
        a = o.append
        s.sE = s.sreg('epoch')
        s.ldE = I('s_load_dword', s.sE, s.dWS[0:2], 0)
        a(s.ldE)
        pc = s.sreg('pc', 2)
        t, d, u = s.v(), s.v(), s.sreg()
        s.lab += 1
        lb = f'L_pc{s.lab}'
        a(I('s_lshl_b32', u, s.sIDX, 2))
        a(I('s_add_u32', u, u, s.sW))
        a(I('s_lshl_b32', u, u, 10))
        a(I('v_and_b32', t, 7, s.vL))
        a(I('v_lshlrev_b32', t, 7, t))
        a(I('v_add_u32', t, u, t))
        a(I('s_getpc_b64', pc))
        a(I('label', lb))
        a(I('v_min_u32', t, f'L_codeend-{lb}-4', t))
        a(I('global_load_dword', d, t, pc))
        return o

    def tag_setup(s):
        s.sTAG, s.vTAG, s.vM0 = s.sreg('tag'), s.v('vtag'), s.v('vm0')
        return [I('s_add_u32', s.sTAG, s.sE, TAGSTEP), I('v_mov_b32', s.vTAG, s.sTAG),
                I('v_min_u32', s.vM0, 1, s.vL), I('v_lshlrev_b32', s.vM0, 30, s.vM0)]

    def lane_floats(s):
        o = []
        a = o.append
        rho, q, t, u = s.v(), s.v(), s.v(), s.v()
        s.fJ1, s.fQ, s.fMU = s.v('fj1'), s.v('fq'), s.v('fmu')
        w16 = s.sreg()
        a(I('v_and_b32', rho, 15, s.vL))
        a(I('v_lshrrev_b32', q, 4, s.vL))
        a(I('s_lshl_b32', w16, s.sW, 4))
        a(I('v_add_u32', t, w16, rho))
        a(I('v_cvt_f32_u32', s.fJ1, t))
        a(I('v_cvt_f32_u32', s.fQ, q))
        a(I('v_and_b32', t, 12, rho))
        a(I('v_add_u32', u, rho, t))
        a(I('v_cvt_f32_u32', s.fMU, u))
        return o

    def sincos(s, step, k, base):
        p, c, sn = s.v(), s.v(), s.v()
        if k == 0:
            return [I('v_cos_f32', c, base), I('v_sin_f32', sn, base)], c, sn
        return [I('v_fmamk_f32', p, step, lit(k), base), I('v_cos_f32', c, p), I('v_sin_f32', sn, p)], c, sn

    def consts_p2(s):
        o = []
        a = o.append
        s.C1A = [s.v(f'c1a{k}', 4, 'a') for k in range(4)]
        s.C1B = [s.v(f'c1b{k}', 4, 'a') for k in range(4)]
        st, ba = s.v(), s.v()
        a(I('v_mul_f32', st, lit(1 / 64), s.fJ1))
        a(I('v_mul_f32', ba, st, s.fQ))
        a(I('v_mul_f32', ba, 4.0, ba))
        pend = []
        for ks in range(4):
            for i in range(4):
                g, c, sn = s.sincos(st, 16 * ks + i, ba)
                ta, tb = s.v(), s.v()
                o += g
                o += pend
                pend = [I('v_cvt_pk_bf16_f32', ta, c, sn), I('v_cvt_pk_bf16_f32', tb, neg(sn), c),
                        I('v_accvgpr_write_b32', s.C1A[ks][i], ta), I('v_accvgpr_write_b32', s.C1B[ks][i], tb)]
        s.C2 = [[s.v(f'c2{t}{k}', 4, 'a') for k in range(2)] for t in range(2)]
        f8q = s.v()
        a(I('v_mul_f32', f8q, lit(8.0), s.fQ))
        mus = []
        for t in range(2):
            mu = s.v()
            if t:
                a(I('v_add_f32', mu, 4.0, s.fMU))
            else:
                mu = s.fMU
            mus.append(mu)
            st, ba = s.v(), s.v()
            a(I('v_mul_f32', st, lit(1 / 32), mu))
            a(I('v_mul_f32', ba, st, f8q))
            for ks in range(2):
                for r in range(4):
                    g, c, sn = s.sincos(st, 4 * ks + r, ba)
                    ta = s.v()
                    o += g
                    o += pend
                    pend = [I('v_cvt_pk_bf16_f32', ta, c, sn), I('v_accvgpr_write_b32', s.C2[t][ks][r], ta)]
        o += pend
        s.T1 = [[None] * 4 for _ in range(2)]
        st, ba = s.v(), s.v()
        a(I('v_mul_f32', st, lit(1 / 2048), s.fJ1))
        a(I('v_mul_f32', ba, st, f8q))
        for tb in range(2):
            for r in range(4):
                g, c, sn = s.sincos(st, 4 * tb + r, ba)
                c.name = sn.name = 'tw'
                o += g
                s.T1[tb][r] = (c, sn)
        s.T3 = [[None] * 4 for _ in range(2)]
        jb, w16 = s.v(), s.sreg()
        a(I('s_lshl_b32', w16, s.sW, 4))
        a(I('v_cvt_f32_u32', jb, w16))
        a(I('v_fmamk_f32', jb, s.fQ, lit(4.0), jb))
        for nt in range(2):
            st, ba = s.v(), s.v()
            a(I('v_mul_f32', st, lit(1 / 2048), mus[nt]))
            a(I('v_mul_f32', ba, st, jb))
            for r in range(4):
                g, c, sn = s.sincos(st, r, ba)
                c.name = sn.name = 'tw'
                o += g
                s.T3[nt][r] = (c, sn)
        return o

    def own_xor(s):
        s.sOWN = s.sreg('own')
        t = s.sreg()
        return [I('s_and_b32', s.sOWN, s.sW, 1), I('s_lshl_b32', s.sOWN, s.sOWN, 5), I('s_lshr_b32', t, s.sW, 1),
                I('s_lshl_b32', t, t, 4), I('s_add_u32', s.sOWN, s.sOWN, t)]

    def consts_finv(s):
        o = []
        a = o.append
        s.FV = [[s.v(f'fv{nq}{j}', 4, 'a') for j in range(8)] for nq in range(2)]
        n0, cb, h2, c64 = s.v(), s.v(), s.v(), s.sreg()
        nb = s.sreg()
        a(I('v_and_b32', n0, 31, s.vL))
        a(I('v_xor_b32', n0, s.sOWN, n0))
        a(I('s_lshl_b32', nb, s.sCT, 6))
        a(I('v_add_u32', n0, nb, n0))
        a(I('v_lshrrev_b32', h2, 5, s.vL))
        a(I('v_lshlrev_b32', h2, 1, h2))
        a(I('s_lshl_b32', c64, s.sW, 6))
        a(I('v_add_u32', h2, c64, h2))
        a(I('v_cvt_f32_u32', cb, h2))
        msk = s.sreg('nyq', 2)
        sp = s.v()
        a(I('v_cmp_eq_u32', msk, 0, h2))
        a(I('v_and_b32', sp, 1, n0))
        a(I('v_lshlrev_b32', sp, 15, sp))
        a(I('v_or_b32', sp, 0x3f00, sp))
        pend = []
        for nq in range(2):
            n, st, ba = s.v(), s.v(), s.v()
            if nq:
                a(I('v_xor_b32', n, 32, n0))
            else:
                n = n0
            a(I('v_cvt_f32_u32', st, n))
            a(I('v_mul_f32', st, lit(1 / 512), st))
            a(I('v_mul_f32', ba, st, cb))
            for j in range(8):
                for i in range(4):
                    g, c, sn = s.sincos(st, 8 * j + (0, 1, 4, 5)[i], ba)
                    ta = s.v()
                    o += g
                    o += pend
                    pend = [I('v_cvt_pk_bf16_f32', ta, c, sn)]
                    if j == 0 and i == 0:
                        pend.append(I('v_cndmask_b32', ta, ta, sp, msk))
                    pend.append(I('v_accvgpr_write_b32', s.FV[nq][j][i], ta))
        o += pend
        return o

    def wt_job(s):
        A, B, C = [], [], []
        a = A.append
        cg, rg, u, vv, t, t2 = [s.sreg() for _ in range(6)]
        a(I('s_and_b32', cg, s.WG, 3))
        a(I('s_lshr_b32', rg, s.WG, 2))
        a(I('s_and_b32', u, rg, 7))
        a(I('s_lshr_b32', vv, rg, 3))
        so, sf = s.sreg(), s.sreg()
        a(I('s_lshl_b32', t, u, 3))
        a(I('s_lshl_b32', t2, vv, 8))
        a(I('s_add_u32', t, t, t2))
        a(I('s_lshl_b32', t2, s.sW, 1))
        a(I('s_add_u32', t, t, t2))
        a(I('s_mul_i32', t, t, 514))
        a(I('s_lshl_b32', t2, cg, 7))
        a(I('s_add_u32', so, t, t2))
        A.append([I('s_cmp_eq_u32', cg, 0), I('s_cselect_b32', t2, 512, t2)])
        a(I('s_add_u32', sf, t, t2))
        r0, r1, vo, vf, mk = [s.v() for _ in range(5)]
        a(I('v_lshrrev_b32', r0, 5, s.vL))
        a(I('v_bfe_u32', r1, s.vL, 3, 2))
        a(I('v_lshl_add_u32', r0, r1, 6, r0))
        a(I('v_mul_u32_u24', vf, 514, r0))
        a(I('v_and_b32', r1, 7, s.vL))
        a(I('v_lshl_add_u32', vo, r1, 4, vf))
        a(I('v_min_u32', mk, 1, r1))
        a(I('v_add_u32', mk, -1, mk))
        a(I('v_and_b32', mk, 0xffff, mk))
        dr, di, fr, fi = s.v('wtr', 4), s.v('wti', 4), s.v(), s.v()
        a(I('buffer_load_dwordx4', dr, vo, s.dWR, so, mods='offen'))
        a(I('buffer_load_dwordx4', di, vo, s.dWI, so, mods='offen'))
        a(I('buffer_load_ushort', fr, vf, s.dWR, sf, mods='offen'))
        a(I('buffer_load_ushort', fi, vf, s.dWI, sf, mods='offen'))
        wa, w1k = s.v(), s.sreg()
        b = B.append
        b(I('s_lshl_b32', w1k, s.sW, 10))
        b(I('s_add_u32', w1k, w1k, 4 * SLOT))
        b(I('v_add_u32', wa, w1k, s.vL16))
        b(I('v_bfi_b32', dr[0], mk, fr, dr[0]))
        b(I('v_bfi_b32', di[0], mk, fi, di[0]))
        w0 = I('ds_write_b128', wa, dr)
        w1 = I('ds_write_b128', wa, di, mods='offset:4096')
        B += [w0, w1]
        c = C.append
        ra, x, y, st = s.v(), s.v(), s.v(), s.sreg()
        c(I('v_lshrrev_b32', x, 2, s.vL))
        c(I('v_and_b32', y, 3, s.vL))
        c(I('v_lshlrev_b32', y, 3, y))
        c(I('v_lshl_add_u32', ra, x, 7, y))
        c(I('s_lshl_b32', st, s.sW, 5))
        c(I('s_add_u32', st, st, 4 * SLOT))
        c(I('v_add_u32', ra, st, ra))
        rd = [[s.v('wq', 2) for _ in range(2)] for _ in range(2)]
        for hi in range(2):
            for m in range(2):
                c(I('ds_read_b64_tr_b16', rd[hi][m], ra, mods=f'offset:{hi * 2048 + m * 4096}'))
        sl, sh = s.sreg(), s.sreg()
        c(I('s_mov_b32', sl, 0x05040100))
        c(I('s_mov_b32', sh, 0x07060302))
        va, so2 = s.v(), s.sreg()
        c(I('v_and_b32', x, 15, s.vL))
        c(I('v_lshlrev_b32', x, 13, x))
        c(I('v_lshrrev_b32', y, 4, s.vL))
        c(I('v_lshl_add_u32', va, y, 4, x))
        c(I('s_lshl_b32', so2, cg, 2))
        c(I('s_add_u32', so2, so2, s.sW))
        fo = s.sreg()
        c(I('s_lshl_b32', fo, so2, 6))
        c(I('s_add_u32', fo, fo, rg))
        c(I('s_lshl_b32', fo, fo, 2))
        c(I('s_add_u32', fo, fo, FW))
        c(I('s_lshl_b32', so2, so2, 17))
        for (src, msk_, sh_, dsh) in ((vv, 1, 0, 12), (u, 7, 1, 10), (vv, 7, 1, 8), (u, 1, 0, 7)):
            z = s.sreg()
            c(I('s_and_b32', z, src, msk_))
            if sh_:
                c(I('s_lshr_b32', z, z, sh_))
            c(I('s_lshl_b32', z, z, dsh))
            c(I('s_add_u32', so2, so2, z))
        c(I('s_add_u32', so2, so2, WT))
        sts = []
        for hi in range(2):
            o4 = s.v('wo', 4)
            for k in range(4):
                c(I('v_perm_b32', o4[k], rd[hi][1][k >> 1], rd[hi][0][k >> 1], (sl, sh)[k & 1]))
            stt = I('buffer_store_dwordx4', o4, va, s.dWS, so2, mods=f'offen offset:{hi * 64} sc1')
            sts.append(stt)
            c(stt)
        return A, B, [w0, w1], C, [[WAIT(*sts), s.flag_store(fo)]]

    def tail_setup(s):
        o = []
        a = o.append
        s.sSB = s.sreg('sb')
        a(I('s_lshl_b32', s.sSB, s.sXCD, 2))
        a(I('s_add_u32', s.sSB, s.sSB, s.sQ))
        rp, t = s.sreg(), s.sreg()
        a(I('s_mul_i32', rp, s.sCT, 7))
        a(I('s_lshr_b32', rp, rp, 2))
        a(I('s_mul_i32', t, s.sQ, 3))
        a(I('s_add_u32', rp, rp, t))
        o.append([I('s_sub_u32', t, rp, 14), I('s_cmp_ge_u32', rp, 14), I('s_cselect_b32', rp, t, rp)])
        s.sPP = []
        w14 = s.sreg()
        a(I('s_mul_i32', w14, s.sW, 14))
        for jp in range(14):
            p, z = s.sreg(f'pp{jp}'), s.sreg()
            o.append([I('s_add_u32', p, rp, jp), I('s_sub_u32', z, p, 14), I('s_cmp_ge_u32', p, 14), I('s_cselect_b32', p, z, p)])
            a(I('s_add_u32', p, p, w14))
            a(I('s_lshl_b32', p, p, 11))
            s.sPP.append(p)
        s.sCT128 = s.sreg('ct128')
        a(I('s_lshl_b32', s.sCT128, s.sCT, 7))
        s.sHB = s.sreg('hb')
        a(I('s_mul_i32', s.sHB, s.sSB, 2 * 112 * 1024))
        a(I('s_add_u32', s.sHB, s.sHB, HH))
        x, y = s.v(), s.v()
        s.vSW = s.v('swz')
        a(I('v_bfe_u32', x, s.vL, 4, 1))
        a(I('v_lshlrev_b32', x, 2, x))
        a(I('v_and_b32', y, 7, s.vL))
        a(I('v_xor_b32', x, x, y))
        a(I('v_lshlrev_b32', s.vSW, 4, x))
        s.vD = [s.v(f'vd{i}') for i in range(4)]
        a(I('v_lshrrev_b32', y, 3, s.vL))
        a(I('v_lshl_add_u32', s.vD[0], y, 10, s.vSW))
        for i in range(1, 4):
            a(I('v_add_u32', s.vD[i], i * 7168, s.vD[0]))
        return o

    def wd_unit(s, jp):
        if jp < 8:
            return (4, 0, 1, 2)[jp >> 1] * SLOT + (jp & 1) * 4096
        if jp == 8:
            return 3 * SLOT
        return s.wd_unit(jp - 9)

    def wd_dma(s, jp):
        so = s.sreg()
        g = [[I('s_lshl_b32', so, s.sPP[jp], 4)], [I('s_add_u32', so, so, s.sCT128)]]
        d = [I('buffer_load_dwordx4', s.vD[i], s.dWD, so, mods=f'offen offset:{i * 1024} lds') for i in range(4)]
        g.append([I('s_add_u32', 'm0', s.sLW, s.wd_unit(jp)), d[0]])
        g += [[x] for x in d[1:]]
        s.wdtok[jp] = d[-1]
        return g

    def tr_addr(s, own):
        o = []
        a = o.append
        x, y, z = s.v(), s.v(), s.v()
        r0, r1 = s.v('tra'), s.v('tra')
        a(I('v_lshrrev_b32', x, 5, s.vL))
        a(I('v_bfe_u32', y, s.vL, 2, 2))
        a(I('v_lshl_add_u32', x, x, 2, y))
        a(I('v_lshlrev_b32', x, 7, x))
        a(I('v_bfe_u32', y, s.vL, 4, 1))
        a(I('v_lshlrev_b32', y, 5, y))
        a(I('v_and_b32', z, 3, s.vL))
        a(I('v_lshl_add_u32', y, z, 3, y))
        a(I('v_bfe_u32', z, s.vL, 3, 1))
        a(I('v_lshlrev_b32', z, 6, z))
        a(I('v_xor_b32', y, y, z))
        if own:
            t = s.sreg()
            a(I('s_lshl_b32', t, s.sOWN, 1))
            a(I('v_xor_b32', y, t, y))
        a(I('v_add3_u32', r0, x, y, s.sLW))
        a(I('v_xor_b32', r1, 64, r0))
        return o, (r0, r1)

    def h_load(s, sq, j, cls='any'):
        key = (sq, j >> 1)
        g = []
        if key not in s.hso:
            so = s.sreg()
            s.hso[key] = so
            g.append(I('s_add_u32', so, s.sPP[j >> 1], s.sHB if sq == 0 else s.sHB2))
        d = s.v(f'h{sq}_', 4, cls)
        g.append(I('buffer_load_dwordx4', d, s.vL16, s.dWS, s.hso[key], mods=f'offen offset:{(j & 1) * 1024} sc1'))
        s.hfrag[(sq, j)] = d
        return g

    def yw_poll(s):
        A, B = [], []
        x, y, sy, sw = s.v(), s.v('l4'), s.sreg(), s.sreg()
        s.vL4 = y
        A.append(I('v_lshlrev_b32', y, 2, s.vL))
        A.append(I('v_and_b32', x, 127, y))
        A.append(I('s_lshr_b32', sy, s.WG, 6))
        A.append(I('s_lshl_b32', sy, sy, 7))
        A.append(I('s_add_u32', sy, sy, FY))
        A.append(I('s_lshr_b32', sw, s.WG, 4))
        A.append(I('s_lshl_b32', sw, sw, 8))
        A.append(I('s_add_u32', sw, sw, FW))
        dy, ly = s.poll_issue(x, sy)
        dw, lw = s.poll_issue(y, sw)
        A += [ly, lw]
        sc = s.sreg('col')
        s.sCOL = sc
        B.append(I('s_lshl_b32', sc, s.WG, 13))
        so, so2 = s.sreg(), s.sreg()
        B.append(I('s_add_u32', so, sc, YT))
        B.append(I('s_add_u32', so2, sc, YT + 4096))
        B.append(s.poll_check(dy, ly))
        s.Y = [[None] * 4 for _ in range(2)]
        for tb in range(2):
            for ks in range(4):
                d = s.v('y', 4, 'any')
                s.Y[tb][ks] = d
                f = ks * 2 + tb
                B.append(I('buffer_load_dwordx4', d, s.vL16, s.dWS, (so, so2)[f >> 2], mods=f'offen offset:{(f & 3) * 1024} sc1'))
        B.append(s.poll_check(dw, lw))
        s.WF = []
        w1k = s.sreg()
        B.append(I('s_lshl_b32', w1k, s.sW, 10))
        B.append(I('s_add_u32', w1k, w1k, sc))
        for m in range(2):
            d, so3 = s.v('wf', 4), s.sreg()
            B.append(I('s_add_u32', so3, w1k, WT + m * 4096))
            B.append(I('buffer_load_dwordx4', d, s.vL16, s.dWS, so3, mods='offen sc1'))
            s.WF.append(d)
        return A, B

    def hflag_poll(s, base):
        A = []
        if not hasattr(s, 'vF28') or s.vF28 is None:
            s.vF28 = s.v('f28')
            A.append(I('v_min_u32', s.vF28, 27, s.vL))
            A.append(I('v_lshlrev_b32', s.vF28, 2, s.vF28))
        so = s.sreg()
        A.append(I('s_lshl_b32', so, s.sXCD, 2))
        A.append(I('s_add_u32', so, so, s.sW))
        A.append(I('s_lshl_b32', so, so, 7))
        A.append(I('s_add_u32', so, so, base))
        d, ld = s.poll_issue(s.vF28, so)
        A.append(ld)
        return A, [s.poll_check(d, ld)]

    def glu_epi(s, acc, G, so):
        o = []
        h = s.v('hout', 4)
        for p in range(0, 8, 2):
            for k in (p, p + 1):
                o.append(I('v_mul_f32', acc[k], G[1], acc[k]))
            for k in (p, p + 1):
                o.append(I('v_exp_f32', acc[k], acc[k]))
            for k in (p, p + 1):
                o.append(I('v_fma_f32', acc[k], acc[k], G[2], G[2]))
            for k in (p, p + 1):
                o.append(I('v_rcp_f32', acc[k], acc[k]))
            for k in (p, p + 1):
                o.append(I('v_mul_f32', acc[8 + k], acc[k], acc[8 + k]))
            o.append(I('v_cvt_pk_bf16_f32', h[p >> 1], acc[8 + p], acc[9 + p]))
        st = I('buffer_store_dwordx4', h, s.vL16, s.dWS, so, mods='offen sc1')
        o.append(st)
        return o, st

    def gemm_path(s):
        o = []
        a = o.append
        s.wdtok, s.hso, s.hfrag, s.vF28 = {}, {}, {}, None
        mt, nt, rot, t = s.sreg('mt'), s.sreg('nt'), s.sreg('rot'), s.sreg()
        a(I('s_and_b32', t, s.sXCD, 1))
        a(I('s_lshl_b32', mt, t, 2))
        a(I('s_add_u32', mt, mt, s.sQ))
        a(I('s_lshr_b32', nt, s.sXCD, 1))
        a(I('s_mul_i32', nt, nt, 7))
        a(I('s_add_u32', nt, nt, s.sCT))
        a(I('s_lshl_b32', rot, s.sQ, 1))
        a(I('s_add_u32', rot, rot, t))
        a(I('s_add_u32', rot, rot, nt))
        sXM, sXT, sWB = s.sreg('xm'), s.sreg('xt'), s.sreg('wb')
        a(I('s_lshl_b32', sXM, mt, 18))
        a(I('s_lshl_b32', sXT, s.sW, 16))
        a(I('s_add_u32', sXT, sXT, sXM))
        a(I('s_mul_i32', sWB, s.sW, 16 * 3584))
        a(I('s_lshl_b32', t, nt, 7))
        a(I('s_add_u32', sWB, sWB, t))
        vX = [s.v(f'vx{i}') for i in range(4)]
        vG = [s.v(f'vg{i}') for i in range(2)]
        vU = [s.v(f'vu{i}') for i in range(2)]
        r8, p, x, y = s.v(), s.v(), s.v(), s.v()
        a(I('v_lshrrev_b32', r8, 3, s.vL))
        a(I('v_and_b32', p, 7, s.vL))
        a(I('v_lshrrev_b32', x, 4, s.vL))
        a(I('v_xor_b32', x, x, p))
        a(I('v_lshlrev_b32', x, 4, x))
        a(I('v_lshl_add_u32', vX[0], r8, 10, x))
        a(I('v_xor_b32', y, 64, vX[0]))
        a(I('v_add_u32', vX[1], 7168, y))
        a(I('v_add_u32', vX[2], 2 * 7168, vX[0]))
        a(I('v_add_u32', vX[3], 3 * 7168, y))
        a(I('v_bfe_u32', x, s.vL, 4, 1))
        a(I('v_lshlrev_b32', x, 1, x))
        a(I('v_xor_b32', x, x, p))
        a(I('v_lshlrev_b32', x, 4, x))
        a(I('v_mul_u32_u24', y, 3584, r8))
        a(I('v_add_u32', vG[0], x, y))
        a(I('v_add_u32', vG[1], 8 * 3584 - 1024, vG[0]))
        a(I('v_xor_b32', vU[0], 64, vG[0]))
        a(I('v_xor_b32', vU[1], 64, vG[1]))
        stok = {}

        def stage_dma(tt):
            sl = (tt % 4) * SLOT
            g = []
            if tt < 8:
                sk, sx, sw_ = s.sreg(), s.sreg(), s.sreg()
                g += [[I('s_add_u32', sk, rot, tt)], [I('s_and_b32', sk, sk, 7)], [I('s_lshl_b32', sx, sk, 7)],
                      [I('s_add_u32', sx, sx, sXT)], [I('s_mul_i32', sw_, sk, 64 * 3584)], [I('s_add_u32', sw_, sw_, sWB)]]
                d = [I('buffer_load_dwordx4', vG[i], s.dWG, sw_, mods=f'offen offset:{i * 1024} lds') for i in range(2)]
                g += [[I('s_add_u32', 'm0', s.sLW, sl + 4096), d[0]], [d[1]]]
                d = [I('buffer_load_dwordx4', vU[i], s.dWU, sw_, mods=f'offen offset:{i * 1024} lds') for i in range(2)]
                g += [[I('s_add_u32', 'm0', s.sLW, sl + 6144), d[0]], [d[1]]]
                d = [I('buffer_load_dwordx4', vX[i], s.dX, sx, mods=f'offen offset:{i * 1024} lds') for i in range(4)]
                g += [[I('s_add_u32', 'm0', s.sLW, sl), d[0]]] + [[z] for z in d[1:]]
            else:
                for e in range(2):
                    sx = s.sreg()
                    g.append([I('s_add_u32', sx, sKW[e], (tt - 8) * 65536)])
                    d = [I('buffer_load_dwordx4', vX[i], s.dX, sx, mods=f'offen offset:{i * 1024} lds') for i in range(4)]
                    g += [[I('s_add_u32', 'm0', s.sLW, sl + e * 4096), d[0]]] + [[z] for z in d[1:]]
            stok[tt] = d[-1]
            return g
        flat = lambda gs: [i for g in gs for i in (g if isinstance(g, list) else [g])]
        a(WAIT(*s.kloads))
        o += flat(stage_dma(0))
        g1 = stage_dma(1)
        o += flat(g1[:P.n1])
        o += s.after_kernarg()
        if P.diag:
            o += [I('v_writelane_b32', s.vST, s.diag_regs[0][0], 62), I('v_writelane_b32', s.vST, s.diag_regs[1][0], 0)]
        vB = [[s.v(f'vb{w}{k}') for k in range(4)] for w in range(2)]
        vA = [s.v('va0'), s.v('va1')]
        row, hh, f, z = s.v(), s.v(), s.v(), s.v()
        a(I('v_and_b32', row, 31, s.vL))
        a(I('v_lshrrev_b32', hh, 5, s.vL))
        a(I('v_bfe_u32', f, s.vL, 1, 3))
        a(I('v_xor_b32', f, f, hh))
        a(I('v_lshlrev_b32', f, 4, f))
        a(I('v_lshl_add_u32', vB[0][0], row, 7, f))
        for k in range(1, 4):
            a(I('v_xor_b32', vB[0][k], 32 * k, vB[0][0]))
        for k in range(4):
            a(I('v_add_u32', vB[1][k], 65536, vB[0][k]))
        vROW16 = s.v('row16')
        a(I('v_lshlrev_b32', vROW16, 4, row))
        up, rr = s.v(), s.v()
        a(I('v_bfe_u32', up, s.vL, 4, 1))
        a(I('v_bfe_u32', rr, s.vL, 2, 2))
        a(I('v_lshl_add_u32', rr, hh, 3, rr))
        a(I('v_lshlrev_b32', rr, 7, rr))
        a(I('v_lshl_add_u32', rr, up, 11, rr))
        a(I('v_bfe_u32', z, s.vL, 3, 2))
        a(I('v_xor_b32', z, s.sW, z))
        a(I('v_lshl_add_u32', rr, z, 5, rr))
        a(I('v_and_b32', z, 3, s.vL))
        a(I('v_lshl_add_u32', rr, z, 3, rr))
        a(I('v_add_u32', vA[0], 4096, rr))
        a(I('v_add_u32', vA[1], 4096 + 65536, rr))
        SEL = s.v('sel', 4)
        a(I('v_xor_b32', z, up, s.vL))
        a(I('v_and_b32', z, 1, z))
        a(I('v_add_u32', z, -1, z))
        for k in range(4):
            a(I('v_and_b32', SEL[k], 0x3f803f80, z))
        sKW = [s.sreg('kw0'), s.sreg('kw1')]
        qc = Queue('const')
        for e in range(2):
            qc.addeach([I('s_lshl_b32', sKW[e], s.sW, 1), I('s_add_u32', sKW[e], sKW[e], rot), I('s_add_u32', sKW[e], sKW[e], e),
                        I('s_and_b32', sKW[e], sKW[e], 7), I('s_lshl_b32', sKW[e], sKW[e], 7), I('s_add_u32', sKW[e], sKW[e], sXM),
                        I('s_add_u32', sKW[e], sKW[e], 32768)])
        qc.addeach(s.own_xor() + s.lane_floats() + s.consts_finv() + s.consts_p2())
        for g in s.tail_setup():
            qc.add(g)
        n = 0
        while n < P.npre and qc.items:
            it = qc.items.pop(0)
            o += it.insts
            n += it.cost
        o += flat(g1[P.n1:])
        o += flat(s.stamp(1))

        def xaddr(slot, off):
            ad = slot * SLOT + off
            return ad >> 16, ad & 0xffff
        acc = [s.v(f'acc{i}', 16) for i in range(8)]
        AF = [s.v(f'af{k}', 4, 'a') for k in range(32)]
        CS = s.v('cs', 4)

        def reads1(k):
            tt, ks = k >> 2, k & 3
            g = []
            w, off = xaddr(tt % 4, ks * 8192)
            g.append(I('ds_read_b64_tr_b16', AF[k][0:2], vA[w], mods=f'offset:{off}'))
            g.append(I('ds_read_b64_tr_b16', AF[k][2:4], vA[w], mods=f'offset:{off + 512}'))
            bs = []
            for i in range(4):
                b = s.v('bf', 4)
                w, off = xaddr(tt % 4, i * 8192)
                g.insert(1 + (i > 0) + i, I('ds_read_b128', b, vB[w][ks], mods=f'offset:{off}'))
                bs.append(b)
            return g, bs
        a(WAIT(stok[0], s.ldE))
        a(I('s_barrier'))
        g, bs = reads1(0)
        o += g
        o += flat(s.stamp(2))
        qr, qd, qm = Queue('rd'), Queue('dma'), Queue('misc')
        beats = []
        for g in stage_dma(2):
            qd.add(g, 0, 14)
        qm.addeach(s.tag_setup(), 0, 20)
        wA, wB, wtok, wC, wF = s.wt_job()
        for k in range(32):
            b0 = 5 * k
            for i in range(4):
                beats.append([I('v_mfma_f32_32x32x16_bf16', acc[i], AF[k], bs[i], acc[i] if k else 0)])
            beats.append([I('v_mfma_f32_16x16x32_bf16', CS, SEL, AF[k], CS if k else 0)])
            if k < 31:
                if (k & 3) == 3:
                    tt = (k >> 2) + 1
                    tg = [stok[tt]] + (wtok if tt == P.wt_bar else [])
                    qr.add([WAIT(*tg), I('s_barrier')], b0, b0)
                    gs = stage_dma(tt + 2)
                    for n, g in enumerate(gs):
                        qd.add(g, b0 + (n * 16) // len(gs), b0 + 18)
                g, bs = reads1(k + 1)
                for n, x_ in enumerate(g):
                    qr.add(x_, b0, b0 + (1 if n < 4 else 2))
        wb = 5 * (4 * P.wt_bar - 1)
        for g in wA:
            qm.add(g, P.wt_load - 8, P.wt_load)
        for g in wB:
            qm.add(g, wb - 6, wb - 1)
        for g in wC:
            qm.add(g, wb + 1, wb + 30)
        G, Gld = [None] * 8, [None] * 8

        def stat_load(ti):
            so = s.sreg()
            row0 = 64 * (ti & 3) + 32 * (ti >> 2)
            d, ld = s.poll_issue(vROW16, so, 4, 'stat')
            G[ti], Gld[ti] = d, ld
            return [I('s_add_u32', so, sST, row0 * 16), ld]
        sST = s.sreg('st')
        qm.addeach([I('s_lshl_b32', sST, mt, 12), I('s_add_u32', sST, sST, STATS)], P.stat_load - 4, P.stat_load)
        for ti in range(4):
            qm.addeach(stat_load(ti), P.stat_load, P.stat_load + 6)
        for g in wF:
            qm.add(g, 150, 156)
        BF = {}

        def read2(u, k):
            b = s.v('bf', 4)
            w, off = xaddr((8 + u) % 4, (k >> 2) * 4096)
            BF[(u, k)] = b
            return I('ds_read_b128', b, vB[w][k & 3], mods=f'offset:{off}')
        qr.add([WAIT(stok[8]), I('s_barrier')], 155, 155)
        for k in range(4):
            qr.add(read2(0, k), 155, 156 + (k >> 1))
        o += weave(beats, [qr, qd, qm, qc], cap=P.cap)
        assert not qr.items and not qd.items and not qm.items, (len(qr.items), len(qd.items), len(qm.items))
        print('const slots left after first pass:', sum(i.cost for i in qc.items), file=sys.stderr)
        o += drain([qc])
        o += flat(s.stamp(3))
        qr, qd, qe, qm = Queue('rd'), Queue('dma'), Queue('epi'), Queue('misc')
        beats = []
        CA = s.v('csa', 4)
        MB = [s.v('mb', 4), s.v('mb', 4)]
        pre = []
        for k in range(1, 4):
            pre += [I('v_mov_b32', CA[k], 0), I('v_mov_b32', MB[0][k], 0), I('v_mov_b32', MB[1][k], 0)]
        mU, mH = s.sreg('mu', 2), s.sreg('mh', 2)
        c0, c1, c2 = s.v(), s.v(), s.v()
        pre += [I('s_mov_b32', mU[0], 0xffff0000), I('s_mov_b32', mU[1], 0xffff0000), I('s_mov_b32', mH[0], 0), I('s_mov_b32', mH[1], -1)]
        qe.addeach(pre, 0, 3)
        qe.addeach([I('v_cndmask_b32', c0, CS[0], CS[1], mU), I('v_cvt_pk_bf16_f32', c1, c0, c0), I('v_and_b32', c2, 0xffff0000, c1),
                    I('v_sub_f32', c0, c0, c2), I('v_cvt_pk_bf16_f32', c0, c0, c0), I('v_cndmask_b32', CA[0], c1, c0, mH)], 1, 4)
        sHS = s.sreg('hs')
        t = s.sreg()
        qm.addeach([I('s_mul_i32', sHS, mt, 8 * 112), I('s_lshl_b32', t, nt, 2), I('s_add_u32', sHS, sHS, t),
                    I('s_add_u32', sHS, sHS, s.sW), I('s_lshl_b32', sHS, sHS, 10), I('s_add_u32', sHS, sHS, HH)], 0, 8)
        sFE = s.sreg('fe')
        t2 = s.sreg()
        qm.addeach([I('s_lshl_b32', sFE, mt, 2), I('s_lshr_b32', t2, s.sXCD, 1), I('s_add_u32', sFE, sFE, t2), I('s_lshl_b32', sFE, sFE, 3),
                    I('s_add_u32', sFE, sFE, s.sCT), I('s_lshl_b32', sFE, sFE, 2), I('s_add_u32', sFE, sFE, s.sW),
                    I('s_lshl_b32', sFE, sFE, 2), I('s_add_u32', sFE, sFE, FE)], 8, 40)
        s.sFE = sFE
        ncorr = [0]
        hst = {}

        def corr(ti, at):
            mb = MB[ncorr[0] & 1]
            ncorr[0] += 1
            qe.add(s.poll_check(G[ti], Gld[ti]), max(0, at - 3), at - 2)
            qe.add(I('v_mov_b32', mb[0], G[ti][0]), max(0, at - 3), at - 2)
            return [I('v_mfma_f32_32x32x16_bf16', acc[ti], CA, mb, acc[ti])]

        def epi(ti, t0, t1, q):
            so = s.sreg()
            tile = 2 * (ti & 3) + (ti >> 2)
            q.add(I('s_add_u32', so, sHS, tile * 112 * 1024), t0, t1)
            e, st = s.glu_epi(acc[ti], G[ti], so)
            q.addeach(e, t0, t1)
            hst[ti] = st
        qe2 = Queue('epi2')
        qm.addeach(stat_load(4), 1, 6)
        start = {}
        for u in range(4):
            start[u] = len(beats)
            for k in range(32):
                bi = len(beats)
                beats.append([I('v_mfma_f32_32x32x16_bf16', acc[4 + u], AF[k], BF[(u, k)], acc[4 + u] if k else 0)])
                if k + 4 < 32:
                    qr.add(read2(u, k + 4), bi, bi)
                elif u < 3:
                    if k == 29:
                        last_reads = [x.insts[0] for x in qr.items[-2:]]
                        qr.add([WAIT(stok[9 + u], *last_reads), I('s_barrier')], bi, bi)
                        qr.add(read2(u + 1, 0), bi, bi)
                        qr.add(read2(u + 1, 1), bi, bi)
                        nb = bi
                    elif k > 29:
                        qr.add(read2(u + 1, k - 28), bi, bi)
                if u == 0 and k in (6, 8, 10, 12):
                    ti = (k - 6) // 2
                    beats.append(corr(ti, len(beats)))
                    epi(ti, len(beats) + 2, P.epi_dead[ti], qe2)
            beats.append(corr(4 + u, len(beats)))
            if u < 3:
                epi(4 + u, len(beats) + 2, len(beats) + 60, qe2)
                qm.addeach(stat_load(5 + u), start[u] + 4, start[u] + 12)
            if u == 0:
                pass
            gs = []
            if u < 2:
                gs += stage_dma(10 + u)
            gs += s.wd_dma(2 * u) + s.wd_dma(2 * u + 1)
            t0 = start[u] - (3 if u else 0)
            for n, g in enumerate(gs):
                qd.add(g, t0 + (n * 26) // len(gs), t0 + 30)
        qm.add([WAIT(*[hst[k] for k in range(4)]), s.flag_store(sFE)], P.eflag, P.eflag)
        qm.sort()
        qp = Queue('poll')
        pa, pb = s.yw_poll()
        for g in pa:
            qp.add(g, P.poll_yw - 6, P.poll_yw)
        ea, eb = s.hflag_poll(FE)
        for g in ea:
            qp.add(g, P.poll_e - 6, P.poll_e)
        for g in pb:
            qp.add(g, P.chk_yw, P.chk_yw + 18)
        o += weave(beats, [qr, qe, qd, qm, qe2, qp], cap=P.cap)
        o += drain([qr, qe, qd, qm, qe2, qp])
        o += flat(s.stamp(4))
        q3 = Queue()
        epi(7, 0, 0, q3)
        extra = [it.insts for it in q3.items]
        sFL = s.sreg()
        late = [I('s_add_u32', sFL, sFE, FL - FE), WAIT(*[hst[k] for k in range(4, 8)]), s.flag_store(sFL)]
        o += s.tail(extra, eb, late)
        return o

    def helper_path(s):
        o = []
        a = o.append
        s.wdtok, s.hso, s.hfrag, s.vF28 = {}, {}, {}, None
        flat = lambda gs: [i for g in gs for i in (g if isinstance(g, list) else [g])]
        a(I('label', 'L_helper'))
        t4, bh, rb, t = s.sreg('t4'), s.sreg('bh'), s.sreg('rb'), s.sreg()
        hid = s.sreg('hid')
        a(I('s_lshl_b32', hid, s.sXCD, 2))
        a(I('s_add_u32', hid, hid, s.sQ))
        a(I('s_lshr_b32', t4, hid, 1))
        a(I('s_and_b32', bh, hid, 1))
        a(I('s_lshl_b32', rb, t4, 7))
        a(I('s_lshl_b32', t, bh, 4))
        a(I('s_add_u32', rb, rb, t))
        a(I('s_lshl_b32', t, s.sW, 2))
        a(I('s_add_u32', rb, rb, t))
        rbb, lx = s.sreg(), s.sreg('lx')
        a(I('s_lshl_b32', rbb, rb, 10))
        a(I('s_lshl_b32', lx, s.sW, 14))
        a(WAIT(*s.kloads))
        xd = []
        groups = []
        for rho in range(16):
            bb, i = rho >> 2, rho & 3
            vo, so = s.v(), s.sreg()
            g = [I('v_xor_b32', vo, rho * 16, s.vL16), I('s_add_u32', so, rbb, (bb + 32 * i) * 1024 - i * 1024)]
            if i == 0:
                g.append(I('s_add_u32', 'm0', lx, bb * 4096))
            d = I('buffer_load_dwordx4', vo, s.dX, so, mods=f'offen offset:{i * 1024} lds')
            g.append(d)
            xd.append(d)
            groups.append(g)
        o += flat(groups[:11])
        o += s.after_kernarg()
        if P.diag:
            o += [I('v_writelane_b32', s.vST, s.diag_regs[0][0], 62), I('v_writelane_b32', s.vST, s.diag_regs[1][0], 0)]
        k1, q, fk, fq4 = s.v(), s.v(), s.v(), s.v()
        a(I('v_and_b32', k1, 15, s.vL))
        a(I('v_lshrrev_b32', q, 4, s.vL))
        a(I('v_cvt_f32_u32', fk, k1))
        a(I('v_cvt_f32_u32', fq4, q))
        a(I('v_mul_f32', fq4, 4.0, fq4))
        m0_, m8 = s.sreg('m0', 2), s.sreg('m8', 2)
        a(I('v_cmp_eq_u32', m0_, 0, k1))
        a(I('v_cmp_lt_u32', m8, 7, k1))
        BC, BS = s.v('bc', 4), s.v('bs', 4)
        st, ba, st2, ba2, z = s.v(), s.v(), s.v(), s.v(), s.v()
        a(I('v_mul_f32', st, lit(1 / 32), fk))
        a(I('v_mul_f32', ba, st, fq4))
        a(I('v_mov_b32', z, 0.5))
        a(I('v_cndmask_b32', st2, st, z, m0_))
        a(I('v_mov_b32', z, lit(0.25)))
        a(I('v_cndmask_b32', z, z, 0, m0_))
        a(I('v_fma_f32', ba2, st2, fq4, z))
        for (stp, bas, dst) in ((st, ba, BC), (st2, ba2, BS)):
            for j in range(4):
                cs = []
                for e in range(2):
                    k = (0, 2, 16, 18)[j] + e
                    p, c = s.v(), s.v()
                    if k:
                        a(I('v_fmamk_f32', p, stp, lit(k), bas))
                    else:
                        p = bas
                    a(I('v_cos_f32', c, p))
                    cs.append(c)
                a(I('v_cvt_pk_bf16_f32', dst[j], cs[0], cs[1]))
        TC, TS = s.v('tc', 4), s.v('ts', 4)
        st, ba = s.v(), s.v()
        a(I('v_mul_f32', st, lit(1 / 512), fk))
        a(I('v_mul_f32', ba, st, fq4))
        for r in range(4):
            p = s.v()
            if r:
                a(I('v_fmamk_f32', p, st, lit(r), ba))
            else:
                p = ba
            a(I('v_cos_f32', TC[r], p))
            a(I('v_sin_f32', TS[r], p))
        ARE, AIM, SRE, SIM = s.v('are', 4), s.v('aim', 4), s.v('sre', 4), s.v('sim', 4)
        st, ba, sg = s.v(), s.v(), s.v()
        a(I('v_mul_f32', st, lit(1 / 16), fk))
        a(I('v_mul_f32', ba, st, fq4))
        a(I('v_mov_b32', z, -1.0))
        a(I('v_cndmask_b32', sg, 1.0, z, m8))
        for r in range(4):
            g, c, sn = s.sincos(st, r, ba)
            o += g
            c2, s2 = s.v(), s.v()
            a(I('v_cvt_pk_bf16_f32', ARE[r], c, sn))
            a(I('v_mul_f32', c2, sg, c))
            a(I('v_mul_f32', s2, sg, sn))
            a(I('v_cvt_pk_bf16_f32', AIM[r], neg(s2), c2))
        st, ba, sh, kk = s.v(), s.v(), s.v(), s.v()
        a(I('v_lshlrev_b32', kk, 5, k1))
        a(I('v_add_u32', z, -240, kk))
        a(I('v_cndmask_b32', kk, kk, z, m8))
        vCSP = s.v('csp')
        a(I('v_mov_b32', sh, 256))
        a(I('v_cndmask_b32', kk, kk, sh, m0_))
        a(I('v_cvt_f32_u32', st, kk))
        a(I('v_mul_f32', st, lit(1 / 512), st))
        a(I('v_mul_f32', ba, st, fq4))
        a(I('v_cndmask_b32', sh, 0, 16, m8))
        for r in range(4):
            g, c, sn = s.sincos(st, r, ba)
            o += g
            a(I('v_cvt_pk_bf16_f32', c, c, 0))
            a(I('v_cvt_pk_bf16_f32', sn, neg(sn), 0))
            a(I('v_lshlrev_b32', SRE[r], sh, c))
            a(I('v_lshlrev_b32', SIM[r], sh, sn))
        ONE = s.v('one', 4)
        for k in range(4):
            a(I('v_mov_b32', ONE[k], 0x3f803f80))
        o += flat(groups[11:])
        vS = [s.v(f'vs{k}') for k in range(4)]
        x, y = s.v(), s.v()
        a(I('v_xor_b32', x, q, k1))
        a(I('v_lshlrev_b32', x, 4, x))
        a(I('v_lshl_add_u32', x, k1, 10, x))
        a(I('v_add_u32', vS[0], lx, x))
        for k in range(1, 4):
            a(I('v_xor_b32', vS[k], 64 * k, vS[0]))
        vT = s.v('vt')
        a(I('v_lshlrev_b32', vT, 3, s.vL))
        a(I('v_add_u32', vT, lx, vT))
        tg = s.tag_setup()
        wA, wB, wtok, wC, wF = s.wt_job()
        o += flat(s.stamp(1))
        a(WAIT(s.ldE))
        o += tg
        a(WAIT(*xd))
        o += flat(s.stamp(2))
        o += flat(wA)
        it = []
        DS, DQ = s.v('dsum', 4), s.v('dsq', 4)
        for ks in range(16):
            f = s.v('xf', 4)
            it.append(I('ds_read_b128', f, vS[ks & 3], mods=f'offset:{(ks >> 2) * 256}'))
            it.append(I('v_mfma_f32_16x16x32_bf16', DS, f, ONE, DS if ks else 0))
            it.append(I('v_mfma_f32_16x16x32_bf16', DQ, f, f, DQ if ks else 0))
        mk = [s.sreg('mk', 2) for _ in range(3)]
        l3 = s.v()
        it.append(I('v_and_b32', l3, 3, s.vL))
        for k in range(3):
            it.append(I('v_cmp_eq_u32', mk[k], k + 1, l3))
        sm, sq = s.v(), s.v()
        it.append(I('v_cndmask_b32', sm, DS[0], DS[1], mk[0]))
        it.append(I('v_cndmask_b32', sq, DQ[0], DQ[1], mk[0]))
        for k in (1, 2):
            it.append(I('v_cndmask_b32', sm, sm, DS[k + 1], mk[k]))
            it.append(I('v_cndmask_b32', sq, sq, DQ[k + 1], mk[k]))
        GR = s.v('gr', 4)
        vR, nm, var, hi = s.v('vr'), s.v(), s.v(), s.v()
        it.append(I('v_mul_f32', nm, lit(-1 / 512), sm))
        it.append(I('v_mul_f32', var, lit(1 / 512), sq))
        it.append(I('v_fma_f32', var, neg(nm), nm, var))
        it.append(I('v_max_f32', var, 0, var))
        it.append(I('v_add_f32', var, lit(1e-5), var))
        it.append(I('v_rsq_f32', vR, var))
        it.append(I('v_sqrt_f32', GR[2], var))
        it.append(I('v_mul_f32', GR[1], lit(-LOG2E), vR))
        it.append(I('v_cvt_pk_bf16_f32', hi, nm, nm))
        it.append(I('v_and_b32', hi, 0xffff0000, hi))
        lo = s.v()
        it.append(I('v_sub_f32', lo, nm, hi))
        it.append(I('v_cvt_pk_bf16_f32', GR[0], hi, lo))
        it.append(I('v_mov_b32', GR[3], s.sTAG))
        va, dg, so = s.v(), s.v(), s.sreg()
        it.append(I('v_bfe_u32', dg, s.vL, 2, 2))
        it.append(I('v_lshl_add_u32', va, l3, 5, dg))
        it.append(I('v_lshlrev_b32', va, 4, va))
        it.append(I('v_xor_b32', dg, dg, q))
        it.append(I('v_min_u32', dg, 1, dg))
        it.append(I('v_lshl_add_u32', va, dg, 30, va))
        it.append(I('s_lshl_b32', so, rb, 4))
        it.append(I('s_add_u32', so, so, STATS))
        it.append(I('buffer_store_dwordx4', GR, va, s.dWS, so, mods='offen sc1'))
        sR = [s.sreg(f'r{k}') for k in range(16)]
        for rho in range(16):
            it.append(I('v_readlane_b32', sR[rho], vR, 20 * (rho >> 2) + (rho & 3)))
        sc, tt = listsched(it)
        print('helper stats model cycles', tt, file=sys.stderr)
        o += sc
        o += flat(s.stamp(3))
        tw, tso = s.v(), s.sreg()
        a(I('v_lshlrev_b32', tw, 7, s.vL))
        a(I('s_lshl_b32', tso, hid, 2))
        a(I('s_add_u32', tso, tso, s.sW))
        a(I('s_mul_i32', tso, tso, 14336))
        for k in range(2):
            a(I('buffer_load_dword', s.v(), tw, s.dWD, tso, mods='offen'))
            if k == 0:
                a(I('s_add_u32', tso, tso, 6144))
        YB = 2 * SLOT
        vW = [s.v(f'vw{r}') for r in range(4)]
        mq2 = s.sreg('mq2', 2)
        cc, c15, ub = s.v(), s.v(), s.sreg('ub')
        a(I('v_cmp_lt_u32', mq2, 1, q))
        a(I('v_lshl_add_u32', cc, q, 7, k1))
        a(I('v_sub_u32', z, 512, cc))
        a(I('v_cndmask_b32', cc, cc, z, mq2))
        a(I('v_and_b32', c15, 15, cc))
        a(I('s_and_b32', ub, s.sW, 1))
        a(I('s_lshl_b32', ub, ub, 3))
        a(I('s_lshr_b32', t, s.sW, 1))
        a(I('s_lshl_b32', t, t, 2))
        a(I('s_add_u32', ub, ub, t))
        a(I('v_xor_b32', c15, ub, c15))
        a(I('v_lshlrev_b32', c15, 4, c15))
        a(I('v_lshl_add_u32', cc, cc, 8, c15))
        a(I('v_add_u32', cc, YB, cc))
        stp, dum = s.v(), s.v()
        a(I('v_mov_b32', z, -8192))
        a(I('v_mov_b32', stp, 8192))
        a(I('v_cndmask_b32', stp, stp, z, mq2))
        a(I('v_add_u32', dum, 4 * SLOT + 16384, s.vL16))
        for r in range(4):
            if r:
                a(I('v_add_u32', cc, cc, stp))
            a(I('v_cndmask_b32', vW[r], cc, dum, m0_))
        a(I('v_lshlrev_b32', x, 7, q))
        a(I('v_add_u32', z, -240, x))
        a(I('v_cndmask_b32', x, x, z, mq2))
        a(I('v_lshlrev_b32', x, 8, x))
        a(I('v_lshl_add_u32', x, k1, 2, x))
        a(I('s_lshl_b32', t, ub, 4))
        a(I('s_add_u32', t, t, YB))
        a(I('v_add_u32', vCSP, t, x))
        it = []
        SP = s.v('sp', 4)
        it += [I('v_mov_b32', SP[k], 0) for k in range(4)]
        ywr = []
        for bb in range(4):
            OUT = [s.v('yo', 4) for r in range(4)]
            for i in range(4):
                rho = 4 * bb + i
                ad, X = s.v(), s.v('xa', 4)
                DR, DI, E1, E2, PB = s.v('dr', 4), s.v('di', 4), s.v('e1', 4), s.v('e2', 4), s.v('pb', 4)
                it.append(I('v_xor_b32', ad, rho * 16, vT))
                it.append(I('ds_read_b64_tr_b16', X[0:2], ad, mods=f'offset:{rho * 1024}'))
                it.append(I('ds_read_b64_tr_b16', X[2:4], ad, mods=f'offset:{rho * 1024 + 512}'))
                it.append(I('v_mfma_f32_16x16x32_bf16', DR, X, BC, 0))
                it.append(I('v_mfma_f32_16x16x32_bf16', DI, X, BS, 0))
                for r in range(4):
                    c, sn, tr_, ti_ = s.v(), s.v(), s.v(), s.v()
                    it.append(I('v_mul_f32', c, sR[rho], TC[r]))
                    it.append(I('v_mul_f32', sn, sR[rho], TS[r]))
                    it.append(I('v_mul_f32', tr_, DR[r], c))
                    it.append(I('v_mul_f32', ti_, DI[r], c))
                    it.append(I('v_fmac_f32', tr_, DI[r], sn))
                    it.append(I('v_fma_f32', ti_, neg(DR[r]), sn, ti_))
                    it.append(I('v_cvt_pk_bf16_f32', PB[r], tr_, ti_))
                    if rho:
                        it.append(I('v_mov_b32_dpp', SP[r], PB[r], mods=f'row_shr:{rho} row_mask:0xf bank_mask:0xf'))
                    else:
                        it.append(I('v_mov_b32', SP[r], PB[r]))
                it.append(I('v_mfma_f32_16x16x32_bf16', E1, ARE, PB, 0))
                it.append(I('v_mfma_f32_16x16x32_bf16', E2, AIM, PB, 0))
                for r in range(4):
                    it.append(I('v_cvt_pk_bf16_f32', OUT[r][i], E1[r], E2[r]))
            for r in range(4):
                ad = s.v()
                if bb:
                    it.append(I('v_xor_b32', ad, bb * 16, vW[r]))
                else:
                    ad = vW[r]
                w_ = I('ds_write_b128', ad, OUT[r])
                ywr.append(w_)
                it.append(w_)
        E1, E2 = s.v('e1', 4), s.v('e2', 4)
        it.append(I('v_mfma_f32_16x16x32_bf16', E1, SRE, SP, 0))
        it.append(I('v_mfma_f32_16x16x32_bf16', E2, SIM, SP, 0))
        for r in range(4):
            pk = s.v()
            it.append(I('v_cvt_pk_bf16_f32', pk, E1[r], E2[r]))
            w_ = I('ds_write_b32', vCSP, pk, mods=f'offset:{r * 8192}')
            ywr.append(w_)
            it.append(w_)
        sc, tt = listsched(it, inorder=P.fft_win)
        print('helper fft model cycles', tt, file=sys.stderr)
        o += sc
        o += flat(wB)
        a(WAIT(*ywr, *wtok))
        a(I('s_barrier'))
        o += flat(s.stamp(4))
        vRd = [s.v() for _ in range(4)]
        a(I('v_xor_b32', x, q, k1))
        a(I('v_lshlrev_b32', x, 4, x))
        a(I('v_lshl_add_u32', x, q, 8, x))
        a(I('s_add_u32', t, lx, YB))
        a(I('v_add_u32', vRd[0], t, x))
        for e in range(1, 4):
            a(I('v_xor_b32', y, 64 * e, vRd[0]))
            a(I('v_add_u32', vRd[e], 1024 * e, y))
        vGo, sy = s.v(), s.sreg()
        a(I('v_bfe_u32', x, s.vL, 3, 1))
        a(I('v_lshlrev_b32', x, 10, x))
        a(I('v_lshl_add_u32', x, q, 13, x))
        a(I('v_and_b32', y, 7, s.vL))
        a(I('v_lshl_add_u32', vGo, y, 4, x))
        a(I('s_lshl_b32', sy, s.sW, 19))
        a(I('s_lshr_b32', t, t4, 2))
        a(I('s_lshl_b32', t, t, 11))
        a(I('s_add_u32', sy, sy, t))
        a(I('s_and_b32', t, t4, 3))
        a(I('s_lshl_b32', t, t, 8))
        a(I('s_add_u32', sy, sy, t))
        a(I('s_lshl_b32', t, bh, 7))
        a(I('s_add_u32', sy, sy, t))
        it = []
        yst = []
        lastrd = []
        for e in range(16):
            d, so = s.v('yb', 4), s.sreg()
            rd = I('ds_read_b128', d, vRd[e & 3], mods=f'offset:{(e >> 2) * 4096}')
            lastrd.append(rd)
            it.append(rd)
            it.append(I('s_add_u32', so, sy, YT + e * 4 * 8192))
            st_ = I('buffer_store_dwordx4', d, vGo, s.dWS, so, mods='offen sc1')
            yst.append(st_)
            it.append(st_)
        it += wC
        sc, _ = listsched(it)
        o += sc
        o += flat(s.stamp(5))
        c1 = s.own_xor() + s.lane_floats() + s.consts_p2()
        o += c1[:260]
        fo = s.sreg()
        a(I('s_lshl_b32', fo, s.sW, 5))
        a(I('s_add_u32', fo, fo, hid))
        a(I('s_lshl_b32', fo, fo, 2))
        a(I('s_add_u32', fo, fo, FY))
        a(WAIT(*yst))
        a(s.flag_store(fo))
        o += flat(wF)
        a(I('s_barrier'))
        o += c1[260:]
        o += flat(s.tail_setup())
        gs = []
        for jp in range(8):
            gs += s.wd_dma(jp)
        cf = s.consts_finv()
        per = len(cf) // len(gs)
        for n, g in enumerate(gs):
            o += g
            o += cf[n * per:(n + 1) * per]
        o += cf[len(gs) * per:]
        pa, pb = s.yw_poll()
        ea, eb = s.hflag_poll(FE)
        o += flat(pa) + flat(ea) + flat(pb)
        o += flat(s.stamp(6))
        o += s.tail([], eb, [])
        return o

    def windowed(s, items, win):
        out = []
        tot = 0
        k = 0
        n = len(items)
        while k < n:
            sc, t = listsched(items[k:k + win])
            out += sc
            tot += t
            k += win
        print('windowed model cycles', tot, file=sys.stderr)
        return out

    def tail(s, extra, echeck, late):
        o = []
        a = o.append
        flat = lambda gs: [i for g in gs for i in (g if isinstance(g, list) else [g])]
        if P.stop <= 1:
            o += flat(extra) + late + flat(echeck)
            return o + s.finish()
        s.sHB2 = s.sreg('hb2')
        it = []
        it.append([I('s_barrier')])
        it += s.wd_dma(8)
        it += echeck
        for j in range(P.nh_first):
            it.append((s.h_load(0, j), 100 + 64 * j))
        it += extra
        M = 'v_mfma_f32_16x16x32_bf16'
        D1 = [[s.v('d1', 4), s.v('d1', 4)] for _ in range(2)]
        for tb in range(2):
            for ks in range(4):
                it.append(I(M, D1[tb][0], s.Y[tb][ks], s.C1A[ks], D1[tb][0] if ks else 0))
                it.append(I(M, D1[tb][1], s.Y[tb][ks], s.C1B[ks], D1[tb][1] if ks else 0))
        for j in range(P.nh_first, 28):
            it.append((s.h_load(0, j), 100 + 64 * j))
        WR = [[s.v('wr') for _ in range(4)] for _ in range(2)]
        for m in range(2):
            for r in range(4):
                it.append(I('v_lshlrev_b32', WR[m][r], 16, s.WF[m][r]))
                it.append(I('v_and_b32', s.WF[m][r], 0xffff0000, s.WF[m][r]))

        def cmul(dr, di, c, sn, conj):
            x, y = s.v(), s.v()
            g = [I('v_mul_f32', x, dr, c), I('v_mul_f32', y, di, c)]
            if conj:
                g += [I('v_fmac_f32', x, di, sn), I('v_fma_f32', y, neg(dr), sn, y)]
            else:
                g += [I('v_fma_f32', x, neg(di), sn, x), I('v_fmac_f32', y, dr, sn)]
            return g, x, y
        PP, QQ = [s.v('p', 4) for _ in range(2)], [s.v('q', 4) for _ in range(2)]
        for tb in range(2):
            for r in range(4):
                g, x, y = cmul(D1[tb][0][r], D1[tb][1][r], *s.T1[tb][r], True)
                it += g
                it.append(I('v_cvt_pk_bf16_f32', PP[tb][r], x, y))
                it.append(I('v_cvt_pk_bf16_f32', QQ[tb][r], y, neg(x)))
        D2 = [[s.v('d2', 4), s.v('d2', 4)] for _ in range(2)]
        for tb in range(2):
            for m in range(2):
                it.append(I(M, D2[m][0], s.C2[m][tb], PP[tb], D2[m][0] if tb else 0))
                it.append(I(M, D2[m][1], s.C2[m][tb], QQ[tb], D2[m][1] if tb else 0))
        PP, QQ = [s.v('p', 4) for _ in range(2)], [s.v('q', 4) for _ in range(2)]
        for m in range(2):
            for r in range(4):
                g, x, y = cmul(D2[m][0][r], D2[m][1][r], WR[m][r], s.WF[m][r], False)
                it += g
                it.append(I('v_cvt_pk_bf16_f32', PP[m][r], x, neg(y)))
                it.append(I('v_cvt_pk_bf16_f32', QQ[m][r], y, x))
        D3 = [[s.v('d3', 4), s.v('d3', 4)] for _ in range(2)]
        for m in range(2):
            for n in range(2):
                it.append(I(M, D3[n][0], PP[m], s.C2[n][m], D3[n][0] if m else 0))
                it.append(I(M, D3[n][1], QQ[m], s.C2[n][m], D3[n][1] if m else 0))
        XB = 3 * SLOT + 4096
        vXW, vXR = s.v('xw'), s.v('xr')
        t = s.sreg()
        it.append(I('s_add_u32', t, s.sLW, XB))
        it.append(I('v_add_u32', vXW, t, s.vL16))
        it.append(I('v_add_u32', vXR, XB, s.vL16))
        ws = []
        for n in range(2):
            U = s.v('u', 4)
            for r in range(4):
                g, x, y = cmul(D3[n][0][r], D3[n][1][r], *s.T3[n][r], False)
                it += g
                it.append(I('v_cvt_pk_bf16_f32', U[r], x, neg(y)))
            w_ = I('ds_write_b128', vXW, U, mods=f'offset:{n * 1024}')
            ws.append(w_)
            it.append(w_)
        it.append([WAIT(*ws), I('s_barrier')])
        D4 = [[s.v('d4', 4), s.v('d4', 4)] for _ in range(2)]
        for ks in range(4):
            for n in range(2):
                U = s.v('ux', 4)
                it.append(I('ds_read_b128', U, vXR, mods=f'offset:{ks * 8192 + n * 1024}'))
                it.append(I(M, D4[n][0], U, s.C1A[ks], D4[n][0] if ks else 0))
                it.append(I(M, D4[n][1], U, s.C1B[ks], D4[n][1] if ks else 0))
        vZ, x, y = s.v('vz'), s.v(), s.v()
        it.append(I('v_and_b32', x, 15, s.vL))
        it.append(I('v_lshrrev_b32', y, 4, s.vL))
        it.append(I('v_lshlrev_b32', y, 4, y))
        it.append(I('v_lshl_add_u32', vZ, x, 6, y))
        zs, w1k = s.sreg(), s.sreg('w1k')
        it.append(I('s_lshl_b32', w1k, s.sW, 10))
        it.append(I('s_add_u32', zs, w1k, s.sCOL))
        zst = []
        for part in range(2):
            Z, so = s.v('z', 4), s.sreg()
            for n in range(2):
                for e in range(2):
                    it.append(I('v_cvt_pk_bf16_f32', Z[2 * n + e], D4[n][part][2 * e], D4[n][part][2 * e + 1]))
            it.append(I('s_add_u32', so, zs, ZT + part * 4096))
            st = I('buffer_store_dwordx4', Z, vZ, s.dWS, so, mods='offen sc1')
            zst.append(st)
            it.append(st)
        ta, vWA = s.tr_addr(True)
        it += ta
        win = {0: vWA}

        def wa(ad):
            w = ad >> 16
            g = []
            if w not in win:
                r = (s.v('tra'), s.v('tra'))
                g = [I('v_add_u32', r[k], w * 65536, vWA[k]) for k in range(2)]
                win[w] = r
            return g, win[w], ad & 0xffff
        WD = {}
        wdrd = {}

        def wd_read(j):
            g, r, off = wa(s.wd_unit(j >> 1) + (j & 1) * 2048)
            if (j & 1) == 0:
                g = g + [WAIT(s.wdtok[j >> 1])]
            out = [g] if g else []
            for nq in range(2):
                d = s.v('wd', 4, 'any')
                WD[(j, nq)] = d
                for e in range(2):
                    rd = I('ds_read_b64_tr_b16', d[2 * e:2 * e + 2], r[nq], mods=f'offset:{off + e * 1024}')
                    out.append([rd])
                    wdrd[j] = rd
            return out
        sc, tt = listsched(it)
        print('P2 model cycles', tt, file=sys.stderr)
        if late:
            pos = min(len(sc), P.lflag // 4)
            while sc[pos - 1].op in ('v_cmp_ne_u32', 's_add_u32', 's_cbranch_vccnz', 'wait') or sc[pos].op in ('label',):
                pos += 1
            sc = sc[:pos] + late + sc[pos:]
        o += sc
        o += flat(s.stamp(8))
        zf = s.sreg()
        zflag = [I('s_lshl_b32', zf, s.WG, 2), I('s_add_u32', zf, zf, w1k), I('s_add_u32', zf, zf, FZ)]
        if P.stop <= 2:
            o += zflag + [WAIT(*zst), s.flag_store(zf)]
            return o + s.finish()
        M32 = 'v_mfma_f32_32x32x16_bf16'
        o += flat(wd_read(0)) + flat(wd_read(1))
        OA = [[s.v(f'oa{sq}0', 16), s.v(f'oa{sq}1', 16, 'any')] for sq in range(2)]
        qr, qd, qm, qh = Queue('rd'), Queue('dma'), Queue('misc'), Queue('h')
        beats = []
        for j in range(28):
            for nq in range(2):
                beats.append([I(M32, OA[0][nq], WD[(j, nq)], s.hfrag[(0, j)], OA[0][nq] if j else 0)])
            if j + 2 < 28:
                jn = j + 2
                if (jn >> 1) >= 9 and (jn >> 1) not in s.wdtok:
                    raise RuntimeError
                for n, g in enumerate(wd_read(jn)):
                    qr.add(g, 2 * j, 2 * j + (n > 2))
            if (j & 1) and (j >> 1) + 9 < 14:
                gs = s.wd_dma((j >> 1) + 9)
                gs[2] = [WAIT(wdrd[j])] + gs[2]
                for g in gs:
                    qd.add(g, 2 * j + 1, 2 * j + 4)
        qm.addeach(zflag, 0, 4)
        qm.add(I('s_add_u32', s.sHB2, s.sHB, 112 * 1024), 0, 4)
        la, lb = s.hflag_poll(FL)
        ev = [(P.poll_l, la), (P.zflag, [[WAIT(*zst), s.flag_store(zf)]]), (P.chk_l, lb)]
        for tt, gs in sorted(ev, key=lambda e: e[0]):
            for g in gs:
                qm.add(g, max(0, tt - 2), tt)
        nh_early = min(28, P.nh_ring)
        for j in range(nh_early):
            qh.add(s.h_load(1, j), P.chk_l + 1 + (j * 3) // 4, 55)
        o += weave(beats, [qr, qm, qd, qh], cap=P.cap)
        o += drain([qr, qm, qd, qh])
        o += flat(s.stamp(9))
        vOW = [None] + [s.v('ow') for _ in range(3)]
        vXO, vXI = s.v('xo'), [None] + [s.v('xi') for _ in range(3)]
        setup = [I('v_add_u32', vXO, s.sLW, s.vL16), I('v_add_u32', vXO, 65536, vXO)]
        for v_ in range(1, 4):
            setup.append(I('v_xor_b32', vXI[v_], v_ * 8192, vXO))
        KSC = float(2048 * 512 // 2)

        def exchange(accs, box):
            wr, rd, add = [], [], []
            for v_ in range(1, 4):
                src = accs[v_ & 1]
                for e in range(2):
                    k = 8 * (v_ >> 1) + 4 * e
                    wr.append(I('ds_write_b128', vXO, src[k:k + 4], mods=f'offset:{box + (v_ - 1) * 2048 + e * 1024}'))
            for v_ in range(1, 4):
                for e in range(2):
                    d = s.v('xin', 4)
                    rd.append(I('ds_read_b128', d, vXI[v_], mods=f'offset:{box + (v_ - 1) * 2048 + e * 1024}'))
                    for k in range(4):
                        add.append(I('v_add_f32', accs[0][4 * e + k], accs[0][4 * e + k], d[k]))
            return wr, [WAIT(*wr), I('s_barrier')], rd, add
        sKS = s.sreg('ksc')

        def silu(acc):
            g = []
            T = s.v('sg', 8)
            for p in range(0, 8, 2):
                for k in (p, p + 1):
                    g.append(I('v_mul_f32', T[k], lit(-LOG2E), acc[k]))
                for k in (p, p + 1):
                    g.append(I('v_exp_f32', T[k], T[k]))
                for k in (p, p + 1):
                    g.append(I('v_fma_f32', T[k], T[k], sKS, sKS))
                for k in (p, p + 1):
                    g.append(I('v_rcp_f32', T[k], T[k]))
                for k in (p, p + 1):
                    g.append(I('v_mul_f32', T[k], T[k], acc[k]))
            return g, T
        qr, qd, qm, qh, qx = Queue('rd'), Queue('dma'), Queue('misc'), Queue('h'), Queue('x')
        beats = []
        for j in range(nh_early, 28):
            qh.add(s.h_load(1, j), max(0, 2 * (j - nh_early) + 1), max(0, 2 * j - 12))
        for j in range(28):
            for nq in range(2):
                beats.append([I(M32, OA[1][nq], WD[(j, nq)], s.hfrag[(1, j)], OA[1][nq] if j else 0)])
        qx.addeach(setup + [I('s_mov_b32', sKS, lit(KSC))], 0, 3)
        wr, bar, rd, add = exchange(OA[0], 0)
        qx.addeach(wr, 3, 16)
        qx.add(bar, 12, 18)
        qx.addeach(rd, 13, 22)
        qx.addeach(add, 18, 40)
        g, G0 = silu(OA[0][0])
        qx.addeach(g, 20, 54)
        zp, zo = s.sreg(), s.sreg()
        za = [I('s_lshr_b32', zp, s.sSB, 3), I('s_lshl_b32', zp, zp, 2), I('s_add_u32', zp, zp, s.sW), I('s_lshl_b32', zp, zp, 8),
              I('s_add_u32', zp, zp, FZ)]
        dz, lz = s.poll_issue(s.vL4, zp)
        qm.addeach(za + [lz], max(0, P.poll_z - 4), P.poll_z)
        vZD = [s.v('zd') for _ in range(4)]
        y = s.v()
        zb = [I('v_lshrrev_b32', y, 3, s.vL), I('v_lshl_add_u32', vZD[0], y, 12, s.vSW)]
        zb += [I('v_add_u32', vZD[i], i * (32768 - 1024), vZD[0]) for i in range(1, 4)]
        zb += [I('s_lshl_b32', zo, s.sW, 19), I('s_lshl_b32', t, s.sSB, 7), I('s_add_u32', zo, zo, t)]
        qm.addeach(zb, P.poll_z, P.chk_z - 1)
        tb_, vZA = s.tr_addr(False)
        qm.addeach(tb_, P.poll_z, P.chk_z - 1)
        vXO2, xs = s.v('xoff'), s.sreg('xs')
        x1, x2 = s.v(), s.v()
        xa = [I('v_and_b32', x1, 31, s.vL), I('v_lshrrev_b32', x2, 5, s.vL), I('v_lshlrev_b32', x2, 4, x2), I('v_lshl_add_u32', vXO2, x1, 10, x2),
              I('s_lshl_b32', xs, s.sSB, 16), I('s_add_u32', xs, xs, s.sCT128), I('s_lshl_b32', t, s.sOWN, 1), I('s_add_u32', xs, xs, t)]
        XS = [xs, s.sreg('xs2')]
        xa.append(I('s_add_u32', XS[1], xs, 32768))
        XV = [s.v('xv', 4), s.v('xv', 4)]
        xa += [I('buffer_load_dwordx4', XV[k], vXO2, s.dX, XS[k], mods='offen') for k in range(2)]
        qm.addeach(xa, P.poll_z, P.chk_z - 1)
        qm.add(s.poll_check(dz, lz), P.chk_z, P.chk_z)
        ztok = []
        for g_ in range(4):
            so = s.sreg()
            d = [I('buffer_load_dwordx4', vZD[i], s.dWS, so, mods=f'offen offset:{i * 1024} sc1 lds') for i in range(4)]
            qm.add(I('s_add_u32', so, zo, ZT + g_ * 32 * 4096), P.chk_z, 55)
            qm.add([I('s_add_u32', 'm0', s.sLW, (g_ >> 1) * SLOT + (g_ & 1) * 4096), d[0]], P.chk_z, 55)
            qm.addeach(d[1:], P.chk_z, 55)
            ztok.append(d[-1])
        ZF = {}

        def z_read(sq, j):
            out = []
            if sq == 0 and (j & 1) == 0:
                out.append([WAIT(ztok[j >> 1])])
            d = s.v('zf', 4, 'any')
            ZF[(sq, j)] = d
            off = (j >> 2) * SLOT + (j & 3) * 2048
            for e in range(2):
                out.append([I('ds_read_b64_tr_b16', d[2 * e:2 * e + 2], vZA[sq], mods=f'offset:{off + e * 1024}')])
            return out
        o += weave(beats, [qh, qm, qx], cap=P.cap)
        o += drain([qh, qm, qx])
        o += flat(s.stamp(10))
        o += flat(z_read(0, 0)) + flat(z_read(0, 1))
        SA = [[s.v(f'sa{sq}0', 16), s.v(f'sa{sq}1', 16, 'any')] for sq in range(2)]
        qr, qx, qy = Queue('rd'), Queue('x'), Queue('y')
        beats = []
        for n in range(16):
            sq, j = n >> 3, n & 7
            for nq in range(2):
                beats.append([I(M32, SA[sq][nq], s.FV[nq][j], ZF[(sq, j)], SA[sq][nq] if j else 0)])
            if n + 2 < 16:
                for g in z_read((n + 2) >> 3, (n + 2) & 7):
                    qr.add(g, 2 * n, 2 * n + 1)
        wr, bar, rd, add = exchange(OA[1], 32768 - 8192 + 8192)
        qx.addeach(wr, 2, 8)
        qx.add(bar, 7, 10)
        qx.addeach(rd, 8, 12)
        qx.addeach(add, 11, 22)
        g, G1 = silu(OA[1][0])
        XF = [s.v('xf', 8), s.v('xf', 8)]

        def xprep(k):
            g = [I('v_permlane32_swap_b32', XV[k][0], XV[k][2]), I('v_permlane32_swap_b32', XV[k][1], XV[k][3])]
            for e in range(4):
                g.append(I('v_lshlrev_b32', XF[k][2 * e], 16, XV[k][e]))
                g.append(I('v_and_b32', XF[k][2 * e + 1], 0xffff0000, XV[k][e]))
            return g
        vXO4, vXI4 = s.v('xo4'), [None] + [s.v('xi4') for _ in range(3)]
        qy.add(I('v_add_u32', vXO4, 65536, vXO), 0, 10)
        for v_ in range(1, 4):
            qy.add(I('v_add_u32', vXI4[v_], 65536, vXI[v_]), 0, 10)
        sav = (vXO, vXI)
        vXO, vXI = vXO4, vXI4
        wr2, bar2, rd2, add2 = exchange(SA[0], 0)
        vXO, vXI = sav
        qx.addeach(wr2, 18, 24)
        qx.add(bar2, 23, 26)
        qx.addeach(rd2, 24, 28)
        qy.addeach(g, 23, 10**9)
        o += weave(beats, [qr, qx, qy], cap=P.cap)
        o += flat(s.stamp(11))

        def final(k, Sacc, G):
            g = []
            O = s.v('out', 4)
            for e in range(8):
                g.append(I('v_fmac_f32', XF[k][e], Sacc[e], G[e]))
            for e in range(4):
                g.append(I('v_cvt_pk_bf16_f32', O[e], XF[k][2 * e], XF[k][2 * e + 1]))
            g += [I('v_permlane32_swap_b32', O[0], O[2]), I('v_permlane32_swap_b32', O[1], O[3])]
            g.append(I('buffer_store_dwordx4', O, vXO2, s.dO, XS[k], mods='offen'))
            return g
        it = [x_.insts for q_ in (qr, qx, qy) for x_ in q_.items]
        wr, bar, rd, add = exchange(SA[1], 0)
        it += wr + xprep(0) + xprep(1) + add2 + final(0, SA[0][0], G0) + [bar] + rd + add + final(1, SA[1][0], G1)
        sc, tt = listsched(it)
        print('final model cycles', tt, file=sys.stderr)
        o += sc
        eo = s.sreg()
        o += [I('s_or_b32', eo, s.WG, s.sW), I('s_cmp_eq_u32', eo, 0), I('s_cselect_b32', eo, 0, BIG), s.flag_store(eo)]
        return o + s.finish()

    def finish(s):
        o = []
        if P.diag:
            t = s.sreg('rt', 2)
            t2 = s.sreg('rt', 2)
            m, m2 = I('s_memrealtime', t), I('s_memtime', t2)
            so, x = s.sreg(), s.v()
            o += [I('s_waitcnt', mods='vmcnt(0)'), m, m2, WAIT(m, m2), I('v_writelane_b32', s.vST, t[0], 63), I('v_writelane_b32', s.vST, t2[0], 15),
                  I('s_lshl_b32', so, s.WG, 2), I('s_add_u32', so, so, s.sW), I('s_lshl_b32', so, so, 8), I('s_add_u32', so, so, STAMPS),
                  I('v_lshlrev_b32', x, 2, s.vL), I('buffer_store_dword', s.vST, x, s.dWS, so, mods='offen')]
        o.append(I('s_endpgm'))
        return o

    def build(s):
        pro = s.prologue()
        paths = []
        for fn in (s.gemm_path, s.helper_path):
            s.slow = []
            body = fn()
            paths.append((body, s.slow))
        shared = {}
        for i in pro:
            for d in i.defs:
                if isinstance(d, Sub) and not d.r.pinned:
                    shared[d.r.id] = d.r
        allocate(pro + [I('comment', 'x', extra_use=list(shared.values()))], s_reserved=list(range(0, 36)) + list(range(96, 100)))
        txt = []
        hv = ha = hs = 0
        for n, (body, slow) in enumerate(paths):
            check_def_before_use(pro + body)
            hi = allocate(pro + body, s_reserved=list(range(0, 36)) + list(range(96, 100)), verbose=True)
            hv, ha, hs = max(hv, hi['v']), max(ha, hi['a']), max(hs, hi['s'])
            full, nops = finalize(pro + body)
            print('path', n, 'instructions', len(full), 'hazard nops', nops, file=sys.stderr)
            if n:
                k = [i.op == 'label' and i.ops[0] == 'L_helper' for i in full].index(True)
                full = full[k:]
            txt.append(text(full))
            for sl in slow:
                txt.append(text(sl))
        hdr = open(__file__.rsplit('/', 1)[0] + '/header.txt').read()
        out = hdr + f'''; @launch grid=(256,1,1) block=(256,1,1) lds=163840
.amdgcn_target "amdgcn-amd-amdhsa--gfx950"
.text
.globl {KNAME}
.p2align 8
.type {KNAME},@function
{KNAME}:
''' + ''.join(txt) + f'''L_end:
  s_endpgm
L_codeend:
.section .rodata,"a"
.p2align 6
.amdhsa_kernel {KNAME}
  .amdhsa_next_free_vgpr 512
  .amdhsa_next_free_sgpr 102
  .amdhsa_accum_offset 256
  .amdhsa_group_segment_fixed_size 0
  .amdhsa_kernarg_size 80
  .amdhsa_user_sgpr_count 2
  .amdhsa_user_sgpr_kernarg_segment_ptr 1
  .amdhsa_system_sgpr_workgroup_id_x 1
.end_amdhsa_kernel
'''
        return out


P.probe = 0
P.probe_arg = 24
P.probe_size = 2097152
P.wt_bar = 5
P.n1 = 8
P.fft_win = 90
P.nh_first = 4
P.epi_dead = (30, 44, 58, 70)
P.nh_ring = 14

if __name__ == '__main__':
    outp = sys.argv[1]
    for kv in sys.argv[2:]:
        k, v = kv.split('=')
        setattr(P, k, eval(v))
    open(outp, 'w').write(Gen().build())
```

```python
import re


class R:
    cnt = 0

    def __init__(s, n=1, cls='v', name='', align=None, pin=None):
        s.n = n
        s.cls = cls
        s.name = name
        R.cnt += 1
        s.id = R.cnt
        if align is None:
            align = 1 if n == 1 else (2 if n == 2 else 4)
        s.align = align
        s.phys = None
        s.pcls = None
        if pin is not None:
            s.phys = pin
            s.pcls = cls
        s.pinned = pin is not None

    def __getitem__(s, k):
        if isinstance(k, slice):
            a = k.start or 0
            b = k.stop if k.stop is not None else s.n
            assert 0 <= a < b <= s.n, (s.name, k)
            return Sub(s, a, b - a)
        assert 0 <= k < s.n, (s.name, k)
        return Sub(s, k, 1)

    def sub(s):
        return Sub(s, 0, s.n)


class Sub:
    def __init__(s, r, off, n, neg=False):
        s.r = r
        s.off = off
        s.n = n
        s.neg = neg

    def __neg__(s):
        return Sub(s.r, s.off, s.n, not s.neg)

    def __getitem__(s, k):
        if isinstance(k, slice):
            a = k.start or 0
            b = k.stop if k.stop is not None else s.n
            return Sub(s.r, s.off + a, b - a)
        return Sub(s.r, s.off + k, 1)

    def fmt(s):
        r = s.r
        assert r.phys is not None, ('unallocated', r.name)
        p = r.phys + s.off
        t = f'{r.pcls}{p}' if s.n == 1 else f'{r.pcls}[{p}:{p + s.n - 1}]'
        return ('-' if s.neg else '') + t

    def regs(s):
        r = s.r
        return [(r.pcls, r.phys + s.off + i) for i in range(s.n)]

    def vregs(s):
        return [(s.r.id, s.off + i) for i in range(s.n)]


def neg(x):
    if isinstance(x, R):
        x = x.sub()
    return -x


SPECIAL = {'vcc': [('s', 106), ('s', 107)], 'exec': [('s', 126), ('s', 127)], 'm0': [('s', 124)],
           'vcc_lo': [('s', 106)], 'vcc_hi': [('s', 107)], 'exec_lo': [('s', 126)], 'exec_hi': [('s', 127)]}
TRANS = ('v_exp_f32', 'v_log_f32', 'v_rcp_f32', 'v_rsq_f32', 'v_sqrt_f32', 'v_sin_f32', 'v_cos_f32')


class I:
    def __init__(s, op, *ops, mods='', extra_use=(), extra_def=(), note=''):
        s.op = op
        s.ops = [o.sub() if isinstance(o, R) else o for o in ops]
        s.mods = mods
        s.note = note
        s.extra_use = [o.sub() if isinstance(o, R) else o for o in extra_use]
        s.extra_def = [o.sub() if isinstance(o, R) else o for o in extra_def]
        s.classify()

    def classify(s):
        op = s.op
        ops = s.ops
        k = None
        d, u = [], []
        if op.startswith('v_mfma'):
            k = 'mfma'
            s.passes = 8 if '32x32' in op else 4
            d, u = ops[:1], ops[1:]
        elif op.startswith('buffer_load') and 'lds' in s.mods.split():
            k = 'dma'
            u = ops + ['m0']
        elif op.startswith('buffer_load') or op.startswith('global_load'):
            k = 'vld'
            d, u = ops[:1], ops[1:]
        elif op.startswith('buffer_store') or op.startswith('global_store'):
            k = 'vst'
            u = ops
        elif op.startswith('ds_read') or op.startswith('ds_bpermute'):
            k = 'dsr'
            d, u = ops[:1], ops[1:]
        elif op.startswith('ds_write'):
            k = 'dsw'
            u = ops
        elif op.startswith('s_load') or op in ('s_memtime', 's_memrealtime'):
            k = 'smem'
            d, u = ops[:1], ops[1:]
        elif op in ('s_waitcnt', 's_nop', 's_barrier', 's_sleep', 's_setprio', 's_endpgm', 's_branch'):
            k = 'misc'
        elif op.startswith('s_cbranch'):
            k = 'misc'
            if 'vcc' in op:
                u = ['vcc']
        elif op.startswith('s_cmp'):
            k = 'salu'
            u = ops
        elif op.startswith('s_'):
            k = 'salu'
            d, u = ops[:1], ops[1:]
        elif op.startswith('v_permlane'):
            k = 'valu'
            d, u = ops[:2], ops[:2]
        elif op in ('v_fmac_f32', 'v_writelane_b32') or '_dpp' in op:
            k = 'valu'
            d, u = ops[:1], ops
        elif op.startswith('v_'):
            k = 'valu'
            d, u = ops[:1], ops[1:]
        elif op in ('label', 'wait', 'raw', 'comment'):
            k = 'pseudo'
        else:
            raise ValueError(op)
        s.kind = k
        s.defs = [o for o in d if isinstance(o, Sub) or o in SPECIAL] + list(s.extra_def)
        s.uses = [o for o in u if isinstance(o, Sub) or (isinstance(o, str) and o in SPECIAL)] + list(s.extra_use)
        s.trans = op in TRANS

    def cost(s):
        if s.kind == 'pseudo':
            return 1 if s.op == 'wait' else 0
        if s.trans:
            return 2
        if s.kind == 'mfma':
            return 2
        return 1

    def fmt(s):
        if s.op == 'label':
            return f'{s.ops[0]}:'
        if s.op == 'raw':
            return s.ops[0]
        if s.op == 'comment':
            return f'; {s.ops[0]}'

        def f(o):
            if isinstance(o, Sub):
                return o.fmt()
            if isinstance(o, float):
                return repr(o)
            if isinstance(o, int) and not (-16 <= o <= 64):
                return hex(o & 0xffffffff)
            return str(o)
        t = '  ' + s.op
        if s.ops:
            t += ' ' + ', '.join(f(o) for o in s.ops)
        if s.mods:
            t += ' ' + s.mods
        if s.note:
            t += '  ; ' + s.note
        return t


def pregs(lst):
    out = []
    for o in lst:
        if isinstance(o, Sub):
            out += o.regs()
        else:
            out += SPECIAL[o]
    return out


def WAIT(*insts):
    w = I('wait')
    w.targets = list(insts)
    return w


class Item:
    def __init__(s, insts, t0=0, t1=10**9):
        s.insts = insts if isinstance(insts, list) else [insts]
        s.t0 = t0
        s.t1 = t1
        s.cost = sum(i.cost() for i in s.insts)


class Queue:
    def __init__(s, name=''):
        s.items = []
        s.name = name

    def add(s, insts, t0=0, t1=10**9):
        if insts != []:
            s.items.append(Item(insts, t0, t1))

    def sort(s):
        s.items.sort(key=lambda it: it.t0)

    def addeach(s, insts, t0=0, t1=10**9):
        for i in insts:
            s.add(i, t0, t1)


def weave(main, queues, cap=6, base=0):
    out = []
    debt = 0
    for bi, beat in enumerate(main):
        i = bi + base
        out += beat
        c = 0
        for x in beat:
            if x.kind == 'mfma':
                c += cap if x.passes == 8 else (cap - 2) // 2
            else:
                c -= x.cost()
        c -= debt
        for q in queues:
            last = -1
            for n, it in enumerate(q.items):
                if it.t1 <= i:
                    last = n
            for it in q.items[:last + 1]:
                assert it.t0 <= i, ('forced before t0', q.name, i, it.t0, it.t1)
                out += it.insts
                c -= it.cost
            q.items = q.items[last + 1:]
        progress = True
        while c > 0 and progress:
            progress = False
            for q in queues:
                if q.items and q.items[0].t0 <= i and (q.items[0].cost <= c + 1):
                    it = q.items.pop(0)
                    out += it.insts
                    c -= it.cost
                    progress = True
                    break
        debt = max(0, min(-c, 2)) if c < 0 else 0
    return out


def drain(queues):
    out = []
    for q in queues:
        for it in q.items:
            out += it.insts
        q.items = []
    return out


def check_def_before_use(prog, predefined=()):
    seen = set(predefined)
    bad = 0
    for n, i in enumerate(prog):
        for o in i.uses:
            if isinstance(o, Sub) and not o.r.pinned:
                for v in o.vregs():
                    if v not in seen and o not in i.defs:
                        print('USE BEFORE DEF', n, i.op, o.r.name, v)
                        bad += 1
                        break
        for o in i.defs:
            if isinstance(o, Sub):
                seen.update(o.vregs())
    assert bad == 0
    return seen


def allocate(prog, nv=256, na=256, ns=100, s_reserved=(), v_reserved=(), verbose=False):
    first, last, regs = {}, {}, {}
    for n, i in enumerate(prog):
        for o in i.defs + i.uses:
            if isinstance(o, Sub):
                r = o.r
                regs[r.id] = r
                first.setdefault(r.id, n)
                last[r.id] = n
    busy = {'v': [-1] * nv, 'a': [-1] * na, 's': [-1] * ns}
    for p in s_reserved:
        busy['s'][p] = 10**9
    for p in v_reserved:
        busy['v'][p] = 10**9
    fixed = {'v': [], 'a': [], 's': []}
    for r in regs.values():
        if r.phys is not None:
            f0 = 0
            fixed[r.pcls].append((r.phys, r.n, f0, last[r.id] if not r.pinned else 10**9))
            for k in range(r.n):
                busy[r.pcls][r.phys + k] = max(busy[r.pcls][r.phys + k], last[r.id] if not r.pinned else 10**9)
    hi = {'v': 0, 'a': 0, 's': 0}
    for r in sorted((r for r in regs.values() if r.phys is None), key=lambda r: first[r.id]):
        order = {'v': 'v', 'a': 'a', 's': 's', 'any': 'av', 'vany': 'va'}[r.cls]
        done = False
        for c in order:
            b = busy[c]
            for p in range(0, len(b) - r.n + 1, r.align):
                if all(b[p + k] < first[r.id] for k in range(r.n)):
                    r.phys, r.pcls = p, c
                    for k in range(r.n):
                        b[p + k] = last[r.id]
                    hi[c] = max(hi[c], p + r.n)
                    done = True
                    break
            if done:
                break
        if not done:
            live = [(x.name, x.n, x.pcls) for x in regs.values() if x.phys is not None and first[x.id] <= first[r.id] <= last[x.id]]
            tot = {}
            for nm, n, c in live:
                key = (re.sub(r'\d+', '', nm), c)
                tot[key] = tot.get(key, 0) + n
            raise RuntimeError(f'out of registers for {r.name} ({r.cls}x{r.n}) at {first[r.id]}: {sorted(tot.items())}')
    if verbose:
        print('high water', hi)
    return hi


def insert_waits(prog):
    out = []
    vm = []
    lg = []
    pend = {}

    def need(insts):
        nv, nl = None, None
        for t in insts:
            if t in vm:
                c = len(vm) - 1 - vm.index(t)
                nv = c if nv is None else min(nv, c)
            if t in lg:
                if any(x.kind == 'smem' for x in lg):
                    c = 0
                else:
                    c = len(lg) - 1 - lg.index(t)
                nl = c if nl is None else min(nl, c)
        if nv is None and nl is None:
            return
        parts = []
        if nv is not None:
            nv = min(nv, 63)
            parts.append(f'vmcnt({nv})')
            del vm[:len(vm) - nv]
        if nl is not None:
            nl = min(nl, 15)
            parts.append(f'lgkmcnt({nl})')
            del lg[:len(lg) - nl]
        out.append(I('s_waitcnt', mods=' '.join(parts)))
        for k in [k for k, t in pend.items() if t not in vm and t not in lg]:
            del pend[k]

    seen = set()
    for i in prog:
        seen.add(id(i))
        if i.op == 'wait':
            for t in i.targets:
                assert id(t) in seen or getattr(t, 'removed', False), ('wait for an instruction that was not issued yet', t.op, t.mods)
            need(i.targets)
            continue
        if i.op == 's_waitcnt':
            m = re.search(r'vmcnt\((\d+)\)', i.mods)
            if m:
                del vm[:max(0, len(vm) - int(m.group(1)))]
            m = re.search(r'lgkmcnt\((\d+)\)', i.mods)
            if m and (int(m.group(1)) == 0 or not any(x.kind == 'smem' for x in lg)):
                del lg[:max(0, len(lg) - int(m.group(1)))]
            for k in [k for k, t in pend.items() if t not in vm and t not in lg]:
                del pend[k]
            out.append(i)
            continue
        t = set()
        for p in pregs(i.uses) + pregs(i.defs):
            if p in pend:
                t.add(pend[p])
        if t:
            need(list(t))
        out.append(i)
        if i.kind in ('dma', 'vld', 'vst'):
            vm.append(i)
            assert len(vm) < 200
        if i.kind in ('dsr', 'dsw', 'smem'):
            lg.append(i)
        if i.kind in ('vld', 'dsr', 'smem'):
            for p in pregs(i.defs):
                pend[p] = i
    return out


def pad_hazards(prog):
    out = []
    hist = []
    pos = 0
    nops = 0

    def states(i):
        if i.op == 's_nop':
            return int(i.ops[0]) + 1
        if i.kind == 'pseudo':
            return 0
        return 1

    for i in prog:
        if i.kind == 'pseudo':
            out.append(i)
            continue
        D = set(pregs(i.defs))
        U = set(pregs(i.uses))
        need = 0
        isvalu = i.kind == 'valu'
        for (p, ppos, pD, pU) in hist:
            dist = pos - ppos - 1
            req = 0
            if p.kind == 'valu':
                vD = {x for x in pD if x[0] != 's'}
                sD = {x for x in pD if x[0] == 's'}
                if i.kind == 'mfma' and vD & U:
                    req = max(req, 2)
                if isvalu and p.trans and vD & U:
                    req = max(req, 1)
                if p.trans and i.kind in ('vst', 'dsw', 'vld', 'dsr', 'dma') and vD & U:
                    req = max(req, 1)
                if isvalu and vD & U and ('_dpp' in i.op or i.op.startswith('v_permlane')):
                    req = max(req, 2)
                if i.op.startswith('v_read') and vD & U:
                    req = max(req, 1)
                if sD & U:
                    if isvalu:
                        req = max(req, 4 if i.op in ('v_readlane_b32', 'v_writelane_b32') else 2)
                    if i.kind in ('vld', 'vst', 'dma'):
                        req = max(req, 5)
                    if i.kind in ('salu', 'misc', 'smem'):
                        req = max(req, 1)
            if p.kind == 'salu' and ('s', 124) in pD and i.kind == 'dma':
                req = max(req, 1)
            if p.kind == 'salu' and (('s', 126) in pD or ('s', 127) in pD) and (i.kind == 'mfma' or '_dpp' in i.op):
                req = max(req, 2)
            if p.kind in ('vst', 'dsw') and ('x4' in p.op or 'x3' in p.op or 'b128' in p.op):
                data = set(pregs([p.ops[0] if p.kind == 'vst' else p.ops[1]]))
                if data & D:
                    req = max(req, 2)
            if p.kind == 'mfma':
                big = 12 if p.passes == 8 else 8
                if i.kind == 'mfma':
                    C = set(pregs([i.ops[3]])) if isinstance(i.ops[3], Sub) else set()
                    AB = set(pregs(i.ops[1:3]))
                    if pD & AB:
                        req = max(req, big)
                    if pD & C:
                        if not (C == pD and p.op == i.op):
                            req = max(req, big - 2)
                    elif pD & D:
                        req = max(req, big - 2)
                elif (pD & (U | D)):
                    req = max(req, big)
                if isvalu or i.kind in ('vld', 'dsr'):
                    pC = set(pregs([p.ops[3]])) if isinstance(p.ops[3], Sub) else set()
                    if pC & D:
                        req = max(req, 7 if p.passes == 8 else 3)
            if req - dist > need:
                need = req - dist
        if need > 0:
            nops += need
            n = need
            while n > 0:
                k = min(n, 16)
                out.append(I('s_nop', k - 1, note='hazard'))
                n -= k
            pos += need
        out.append(i)
        hist.append((i, pos, D, U))
        pos += states(i)
        hist = [h for h in hist if pos - h[1] <= 20]
    return out, nops


def finalize(prog):
    p = insert_waits(prog)
    p, nops = pad_hazards(p)
    return p, nops


def text(prog):
    return '\n'.join(i.fmt() for i in prog) + '\n'


def listsched(items, vlat=700, dslat=110, t_start=0, inorder=0):
    nodes = []
    rel = []
    boost = []
    for g in items:
        t0, bo = 0, 0
        if isinstance(g, tuple):
            g, t0, bo = (g + (0,))[:3]
        g = g if isinstance(g, list) else [g]
        nodes.append(g)
        rel.append(t0)
        boost.append(bo)
    n = len(nodes)

    def keys(lst):
        o = []
        for x in lst:
            if isinstance(x, Sub):
                o += x.vregs()
            else:
                o.append(x)
        return o
    preds = [dict() for _ in range(n)]
    lastdef, readers = {}, {}
    last_vm = None
    last_bar = None
    ds_since_bar = []
    last_dsw = {}
    dsr_since_w = {}
    owner = {}
    for k, g in enumerate(nodes):
        for i in g:
            owner[id(i)] = k

    def lat(p, c_inst, same_c):
        if p.kind == 'mfma':
            if same_c:
                return 4 * p.passes
            return 36 if p.passes == 4 else 52
        if p.kind == 'dsr':
            return dslat
        if p.kind == 'vld':
            return vlat
        if p.kind == 'smem':
            return 200
        if p.kind == 'valu' and c_inst.kind == 'mfma':
            return 12
        if p.kind == 'valu' and ('_dpp' in c_inst.op or c_inst.op.startswith('v_permlane')):
            return 12
        if p.trans:
            return 12
        return 4

    def dep(a, b, l):
        if a is not None and a != b:
            preds[b][a] = max(preds[b].get(a, 0), l)
    for k, g in enumerate(nodes):
        for i in g:
            if i.op == 'wait':
                for t in i.targets:
                    if id(t) in owner:
                        dep(owner[id(t)], k, {'dsr': dslat, 'dsw': 60}.get(t.kind, vlat))
            for u in keys(i.uses):
                if u in lastdef:
                    a, p = lastdef[u]
                    same = i.kind == 'mfma' and p.kind == 'mfma' and isinstance(i.ops[3], Sub) and u in i.ops[3].vregs() and p.op == i.op
                    dep(a, k, lat(p, i, same))
            for d in keys(i.defs):
                if d in lastdef:
                    a, p = lastdef[d]
                    if not (i.kind == 'mfma' and p.kind == 'mfma'):
                        dep(a, k, lat(p, i, False) if p.kind in ('mfma', 'dsr', 'vld') else 4)
                    else:
                        dep(a, k, 4)
                for a in readers.get(d, []):
                    dep(a, k, 4)
            for u in keys(i.uses):
                readers.setdefault(u, []).append(k)
            for d in keys(i.defs):
                lastdef[d] = (k, i)
                readers[d] = []
            if i.kind in ('vld', 'vst', 'dma'):
                dep(last_vm, k, 4)
                last_vm = k
                if i.kind == 'dma':
                    dep(last_bar, k, 4)
            if i.kind in ('dsr', 'dsw'):
                dep(last_bar, k, 4)
                ds_since_bar.append(k)
                rg = getattr(i, 'region', 0)
                dep(last_dsw.get(rg), k, 4)
                if i.kind == 'dsw':
                    for a in dsr_since_w.get(rg, []):
                        dep(a, k, 4)
                    dsr_since_w[rg] = []
                    last_dsw[rg] = k
                else:
                    dsr_since_w.setdefault(rg, []).append(k)
            if i.op == 's_barrier':
                for a in ds_since_bar:
                    dep(a, k, 4)
                dep(last_bar, k, 4)
                ds_since_bar = []
                last_bar = k
            if i.op.startswith('s_cbranch'):
                dep(last_vm, k, 4)
                last_vm = k
    dur = [sum(0 if (i.kind == 'pseudo' and i.op != 'wait') else (8 if (i.trans or i.kind == 'mfma') else 4) for i in g) for g in nodes]
    succ = [[] for _ in range(n)]
    for b in range(n):
        for a, l in preds[b].items():
            succ[a].append((b, l))
    prio = [0] * n
    for a in range(n - 1, -1, -1):
        prio[a] = max([l + prio[b] for b, l in succ[a]] + [dur[a]])
    for a in range(n - 1, -1, -1):
        for b, l in succ[a]:
            boost[a] = max(boost[a], boost[b])
    prio = [p + b for p, b in zip(prio, boost)]
    ready_t = [max(t_start, r) for r in rel]
    done = [False] * n
    lo = 0
    cnt = [len(preds[b]) for b in range(n)]
    avail = [k for k in range(n) if cnt[k] == 0]
    t = t_start
    pipe = t_start
    out = []
    while avail:
        def start(k):
            s = ready_t[k]
            if nodes[k][0].kind == 'mfma':
                s = max(s, pipe)
            if nodes[k][0].op.startswith('v_pk_'):
                s = max(s, pipe + 10)
            return s
        while lo < n and done[lo]:
            lo += 1
        pool = [k for k in avail if k < lo + inorder] if inorder else avail
        cand = [k for k in pool if start(k) <= t]
        if not cand:
            t = min(start(k) for k in pool)
            continue
        k = min(cand) if inorder else max(cand, key=lambda k: (prio[k], -k))
        avail.remove(k)
        done[k] = True
        out += nodes[k]
        tt = t
        for i in nodes[k]:
            if i.kind == 'mfma':
                tt = max(tt, pipe)
                pipe = tt + 4 * i.passes
            tt += 0 if (i.kind == 'pseudo' and i.op != 'wait') else (8 if (i.trans or i.kind == 'mfma') else 4)
        issue_last = tt - 4
        for b, l in succ[k]:
            ready_t[b] = max(ready_t[b], issue_last + l - (4 if nodes[k][-1].kind == 'mfma' or nodes[k][-1].trans else 0))
            cnt[b] -= 1
            if cnt[b] == 0:
                avail.append(b)
        t = tt
    assert len(out) == sum(len(g) for g in nodes)
    return out, t


def ablate(prog, pred):
    out = []
    for i in prog:
        if pred(i):
            i.removed = True
            out.append(I('comment', 'removed', extra_def=[d for d in i.defs if isinstance(d, Sub)], extra_use=[d for d in i.uses if isinstance(d, Sub)]))
        else:
            out.append(i)
    return out
```

```python
import struct
import sys
from asmlib import *

KNAME = 'recurrent_scan__spectral_gfnet__glu_gated_glu__prompt_kernel'

FW, FY, FE, FL, FZ = 0x1000, 0x2000, 0x3000, 0x4000, 0x5000
CP, ZP = 8192 + 128, 4096 + 128
STATS, WT, YT, ZT, HH, STAMPS = 0x10000, 0x100000, 0x400000, 0x800000, 0x1000000, 0x1800000
WS_SIZE = 0x2000000
BIG = 0x40000000
TAGSTEP = 0x9E3779B9
LOG2E = 1.4426950408889634
SLOT = 32768


def fl(x):
    return struct.unpack('<I', struct.pack('<f', x))[0]


def lit(x):
    return hex(fl(x))


class P:
    diag = False
    stop = 99
    npre = 300
    wt_load = 45
    stat_load = 120
    eflag = 92
    poll_e = 118
    poll_yw = 88
    chk_yw = 112
    poll_l = 10
    chk_l = 34
    lflag = 800
    zflag = 30
    poll_z = 66
    chk_z = 88
    cap = 6


class Gen:
    def __init__(s):
        s.slow = []
        s.lab = 0
        S = lambda n, pin: R(n, 's', pin=pin)
        s.KA = S(2, 0)
        s.WG = S(1, 2)
        s.dX, s.dWR, s.dWI, s.dWG, s.dWU, s.dWD, s.dO, s.dWS = [S(4, 4 + 4 * k) for k in range(8)]
        s.V0 = R(1, 'v', pin=0)
        s.nstamp = 0

    def sreg(s, name='s', n=1):
        return R(n, 's', name)

    def v(s, name='t', n=1, cls='v'):
        return R(n, cls, name)

    def stamp(s, k):
        if not P.diag:
            return []
        t = s.sreg('st', 2)
        m = I('s_memtime', t)
        return [[m, WAIT(m), I('v_writelane_b32', s.vST, t[0], k)]]

    def fine(s, k):
        return [i for g in s.stamp(k) for i in g] if P.fine else []

    def abl(s, ph, prog):
        for (p, what) in P.abl:
            if p == ph:
                prog = ablate(prog, {'dma': lambda i: i.kind == 'dma', 'mfma': lambda i: i.kind == 'mfma',
                                     'valu': lambda i: i.kind == 'valu' and (i.trans or i.op in ('v_cvt_pk_bf16_f32', 'v_accvgpr_write_b32', 'v_fmamk_f32', 'v_mul_f32', 'v_fma_f32')),
                                     'dsr': lambda i: i.kind == 'dsr', 'wd': lambda i: i.kind == 'dma' and i.ops[1].r is s.dWD,
                                     'xd': lambda i: i.kind == 'dma' and i.ops[1].r is s.dX, 'st': lambda i: i.kind == 'vst' and 'x4' in i.op,
                                     'vld': lambda i: i.kind == 'vld' and i.op != 'buffer_load_dword' and i.ops[0].r.name != 'stat'}[what])
        return prog

    def pace(s, q, gs, t0, span):
        nm = sum(any(i.kind in ('dma', 'vld', 'vst') for i in g) for g in gs)
        k = 0
        for g in gs:
            t = t0 + (k * span) // nm
            if any(i.kind in ('dma', 'vld', 'vst') for i in g):
                q.add(g, t, t + 1)
                k += 1
            else:
                q.add(g, max(t0, t - 3), t + 1)

    def poll_issue(s, voff, soff, n=1, name='fl'):
        d = s.v(name, n)
        op = 'buffer_load_dword' + ('' if n == 1 else f'x{n}')
        if P.nopoll and n == 1:
            return d, I('comment', 'nopoll', extra_def=[d], extra_use=[voff, soff])
        return d, I(op, d, voff, s.dWS, soff, mods='offen sc1')

    def poll_check(s, d, ld, did=None):
        if P.nopoll:
            return [I('comment', 'nocheck', extra_use=[d])]
        s.lab += 1
        a, b = f'L_poll{s.lab}', f'L_back{s.lab}'
        tagreg = d[d.n - 1]
        br = I('s_cbranch_vccnz', a, extra_use=[ld.ops[1], ld.ops[3], s.sCNT] if isinstance(ld.ops[3], Sub) else [ld.ops[1], s.sCNT])
        s.slow.append([I('label', a), I('s_mov_b32', s.sCNT, 1), I('label', a + 'x'),
                       I('s_sleep', 2),
                       I(ld.op, *ld.ops, mods=ld.mods), I('s_waitcnt', mods='vmcnt(0)'),
                       I('v_cmp_ne_u32', 'vcc', s.sTAG, tagreg), I('s_nop', 4),
                       I('s_cbranch_vccz', b),
                       I('s_add_u32', s.sCNT, s.sCNT, 1), I('s_cmp_lt_u32', s.sCNT, 0x8000),
                       I('s_cbranch_scc1', a + 'x'), I('s_branch', b)])
        rec = []
        if P.diag and did is not None:
            rec = [I('v_writelane_b32', s.vST, s.sCNT, did), I('s_mov_b32', s.sCNT, 0)]
        return [I('v_cmp_ne_u32', 'vcc', s.sTAG, tagreg), br, I('label', b)] + rec

    def flag_store(s, soff):
        if P.nopoll > 1:
            return I('comment', 'noflag', extra_use=[soff])
        return I('buffer_store_dword', s.vTAG, s.vM0, s.dWS, soff, mods='offen sc1')

    def prologue(s):
        o = []
        a = o.append
        a(I('s_cmp_ge_u32', s.WG, 256))
        a(I('s_cbranch_scc1', 'L_end'))
        pc = s.sreg('pc', 2)
        t, u, t2 = s.v(), s.sreg(), s.v()
        s.vCT = s.v('touch')
        a(I('s_getpc_b64', pc))
        a(I('label', 'L_pc'))
        a(I('s_lshr_b32', u, s.WG, 3))
        a(I('s_mul_i32', u, u, P.ncode * 4 * 128))
        a(I('v_lshrrev_b32', t, 6, s.V0))
        a(I('v_mul_u32_u24', t, P.ncode, t))
        a(I('v_and_b32', t2, 63, s.V0))
        a(I('v_min_u32', t2, P.ncode - 1, t2))
        a(I('v_add_lshl_u32', t, t, t2, 7))
        a(I('v_add_u32', t, u, t))
        a(I('v_min_u32', t, 'L_codeend-L_pc-4', t))
        a(I('global_load_dword', s.vCT, t, pc))
        lds = []
        for d, off in ((s.dX, 0), (s.dWG, 32), (s.dWU, 40), (s.dWS, 72), (s.dWR, 8), (s.dWI, 16), (s.dWD, 48), (s.dO, 56)):
            lds.append(I('s_load_dwordx2', d[0:2], s.KA, off))
        o += lds
        if P.diag:
            s.vST = s.v('stampv')
            t = s.sreg('rt', 2)
            t2 = s.sreg('rt2', 2)
            a(I('v_mov_b32', s.vST, 0))
            m = I('s_memrealtime', t)
            m2 = I('s_memtime', t2)
            o += [m, m2]
        for d, n in ((s.dX, 2097152), (s.dWG, 1835008), (s.dWU, 1835008), (s.dWS, WS_SIZE), (s.dWR, 1052672), (s.dWI, 1052672),
                     (s.dWD, 1835008), (s.dO, 2097152)):
            a(I('s_mov_b32', d[2], n))
            a(I('s_mov_b32', d[3], 0x20000))
        s.vL, s.sW = s.v('lane'), s.sreg('wave')
        t = s.v()
        a(I('v_lshrrev_b32', t, 6, s.V0))
        a(I('v_and_b32', s.vL, 63, s.V0))
        a(I('v_readfirstlane_b32', s.sW, t))
        s.sXCD, s.sIDX, s.sQ, s.sCT = s.sreg('xcd'), s.sreg('idx'), s.sreg('q'), s.sreg('ct')
        a(I('s_and_b32', s.sXCD, s.WG, 7))
        a(I('s_lshr_b32', s.sIDX, s.WG, 3))
        a(I('s_and_b32', s.sQ, s.sIDX, 3))
        a(I('s_lshr_b32', s.sCT, s.sIDX, 2))
        s.sCM = s.sreg('cm')
        a(I('s_xor_b32', s.sCM, s.sCT, P.cm_xor))
        s.sSB, s.sMT, s.sNT, s.sROT = s.sreg('sb'), s.sreg('mt'), s.sreg('nt'), s.sreg('rot')
        b0, b1 = s.sreg(), s.sreg()
        a(I('s_and_b32', b0, s.sXCD, 1))
        a(I('s_lshr_b32', b1, s.sXCD, 1))
        a(I('s_lshl_b32', s.sMT, b0, 2))
        a(I('s_add_u32', s.sSB, s.sMT, b1))
        a(I('s_lshl_b32', s.sSB, s.sSB, 2))
        a(I('s_add_u32', s.sSB, s.sSB, s.sQ))
        a(I('s_add_u32', s.sMT, s.sMT, s.sQ))
        a(I('s_mul_i32', s.sNT, b1, 7))
        a(I('s_add_u32', s.sNT, s.sNT, s.sCT))
        if P.skip3:
            r7 = s.sreg()
            a(I('s_lshl_b32', s.sROT, s.sQ, 1))
            a(I('s_add_u32', s.sROT, s.sROT, b0))
            a(I('s_add_u32', s.sROT, s.sROT, s.sCT))
            a(I('s_sub_u32', r7, s.sROT, 7))
            a(I('s_min_u32', s.sROT, s.sROT, r7))
            a(I('s_sub_u32', r7, s.sROT, 7))
            a(I('s_min_u32', s.sROT, s.sROT, r7))
            a(I('s_add_u32', s.sROT, s.sROT, 4))
            a(I('s_cmp_eq_u32', s.sCT, 7))
            a(I('s_cselect_b32', s.sROT, 3, s.sROT))
        else:
            a(I('s_lshl_b32', s.sROT, s.sQ, 1))
            a(I('s_add_u32', s.sROT, s.sROT, b0))
            a(I('s_add_u32', s.sROT, s.sROT, s.sNT))
        if P.rotmask != 7:
            a(I('s_and_b32', s.sROT, s.sROT, P.rotmask))
        s.sLW = s.sreg('lw')
        a(I('s_lshl_b32', s.sLW, s.sW, 13))
        s.vL16 = s.v('l16')
        a(I('v_lshlrev_b32', s.vL16, 4, s.vL))
        s.sCNT = s.sreg('cnt')
        a(I('s_mov_b32', s.sCNT, 0))
        if P.probe:
            dB = R(4, 's', 'probe', pin=96)
            lb = I('s_load_dwordx2', dB[0:2], s.KA, P.probe_arg)
            o += [lb, I('s_mov_b32', dB[2], P.probe_size), I('s_mov_b32', dB[3], 0x20000), WAIT(lb)]
            pa, pd, ps = s.v(), s.v(), s.sreg()
            a(I('s_lshl_b32', ps, s.WG, 12))
            a(I('v_mov_b32', pa, ps))
            for k in range(P.probe):
                a(I('buffer_load_dword', pd, pa, dB, 0, mods='offen'))
                a(I('v_and_b32', pd, 0, pd))
                a(I('v_add3_u32', pa, pa, pd, 64))
                a(I('v_add_u32', pa, 64, pa))
        a(I('s_cmp_eq_u32', s.sCT, 7))
        a(I('s_cbranch_scc1', 'L_helper'))
        s.kloads = lds
        if P.diag:
            s.diag_regs = (m.ops[0], m2.ops[0])
        return o

    def after_kernarg(s):
        o = []
        a = o.append
        s.sE = s.sreg('epoch')
        s.ldE = I('s_load_dword', s.sE, s.dWS[0:2], 0)
        a(s.ldE)
        s.keep = [s.vCT]
        return o

    def tag_setup(s):
        s.sTAG, s.vTAG, s.vM0 = s.sreg('tag'), s.v('vtag'), s.v('vm0')
        return [I('s_add_u32', s.sTAG, s.sE, TAGSTEP), I('v_mov_b32', s.vTAG, s.sTAG),
                I('v_min_u32', s.vM0, 1, s.vL), I('v_lshlrev_b32', s.vM0, 30, s.vM0)]

    def lane_floats(s):
        o = []
        a = o.append
        rho, q, t, u = s.v(), s.v(), s.v(), s.v()
        s.fJ1, s.fQ, s.fMU = s.v('fj1'), s.v('fq'), s.v('fmu')
        w16 = s.sreg()
        a(I('v_and_b32', rho, 15, s.vL))
        a(I('v_lshrrev_b32', q, 4, s.vL))
        a(I('s_lshl_b32', w16, s.sW, 4))
        a(I('v_add_u32', t, w16, rho))
        a(I('v_cvt_f32_u32', s.fJ1, t))
        a(I('v_cvt_f32_u32', s.fQ, q))
        a(I('v_and_b32', t, 12, rho))
        a(I('v_add_u32', u, rho, t))
        a(I('v_cvt_f32_u32', s.fMU, u))
        return o

    def sincos(s, step, k, base):
        p, c, sn = s.v(), s.v(), s.v()
        if k == 0:
            return [I('v_cos_f32', c, base), I('v_sin_f32', sn, base)], c, sn
        return [I('v_fmamk_f32', p, step, lit(k), base), I('v_cos_f32', c, p), I('v_sin_f32', sn, p)], c, sn

    def consts_p2(s):
        o = []
        a = o.append
        s.C1A = [s.v(f'c1a{k}', 4, 'a') for k in range(4)]
        s.C1B = [s.v(f'c1b{k}', 4, 'a') for k in range(4)]
        st, ba = s.v(), s.v()
        a(I('v_mul_f32', st, lit(1 / 64), s.fJ1))
        a(I('v_mul_f32', ba, st, s.fQ))
        a(I('v_mul_f32', ba, 4.0, ba))
        pend = []
        for ks in range(4):
            for i in range(4):
                g, c, sn = s.sincos(st, 16 * ks + i, ba)
                ta, tb = s.v(), s.v()
                o += g
                o += pend
                pend = [I('v_cvt_pk_bf16_f32', ta, c, sn), I('v_cvt_pk_bf16_f32', tb, neg(sn), c),
                        I('v_accvgpr_write_b32', s.C1A[ks][i], ta), I('v_accvgpr_write_b32', s.C1B[ks][i], tb)]
        s.C2 = [[s.v(f'c2{t}{k}', 4, 'a') for k in range(2)] for t in range(2)]
        f8q = s.v()
        a(I('v_mul_f32', f8q, lit(8.0), s.fQ))
        mus = []
        for t in range(2):
            mu = s.v()
            if t:
                a(I('v_add_f32', mu, 4.0, s.fMU))
            else:
                mu = s.fMU
            mus.append(mu)
            st, ba = s.v(), s.v()
            a(I('v_mul_f32', st, lit(1 / 32), mu))
            a(I('v_mul_f32', ba, st, f8q))
            for ks in range(2):
                for r in range(4):
                    g, c, sn = s.sincos(st, 4 * ks + r, ba)
                    ta = s.v()
                    o += g
                    o += pend
                    pend = [I('v_cvt_pk_bf16_f32', ta, c, sn), I('v_accvgpr_write_b32', s.C2[t][ks][r], ta)]
        o += pend
        s.T1 = [[None] * 4 for _ in range(2)]
        st, ba = s.v(), s.v()
        a(I('v_mul_f32', st, lit(1 / 2048), s.fJ1))
        a(I('v_mul_f32', ba, st, f8q))
        for tb in range(2):
            for r in range(4):
                g, c, sn = s.sincos(st, 4 * tb + r, ba)
                c.name = sn.name = 'tw'
                o += g
                s.T1[tb][r] = (c, sn)
        s.T3 = [[None] * 4 for _ in range(2)]
        jb, w16 = s.v(), s.sreg()
        a(I('s_lshl_b32', w16, s.sW, 4))
        a(I('v_cvt_f32_u32', jb, w16))
        a(I('v_fmamk_f32', jb, s.fQ, lit(4.0), jb))
        for nt in range(2):
            st, ba = s.v(), s.v()
            a(I('v_mul_f32', st, lit(1 / 2048), mus[nt]))
            a(I('v_mul_f32', ba, st, jb))
            for r in range(4):
                g, c, sn = s.sincos(st, r, ba)
                c.name = sn.name = 'tw'
                o += g
                s.T3[nt][r] = (c, sn)
        return o

    def own_xor(s):
        s.sOWN = s.sreg('own')
        t = s.sreg()
        return [I('s_and_b32', s.sOWN, s.sW, 1), I('s_lshl_b32', s.sOWN, s.sOWN, 5), I('s_lshr_b32', t, s.sW, 1),
                I('s_lshl_b32', t, t, 4), I('s_add_u32', s.sOWN, s.sOWN, t)]

    def consts_finv(s):
        o = []
        a = o.append
        s.FV = [[s.v(f'fv{nq}{j}', 4, 'v') for j in range(8)] for nq in range(2)]
        n0, cb, h2, c64 = s.v(), s.v(), s.v(), s.sreg()
        nb = s.sreg()
        a(I('v_and_b32', n0, 31, s.vL))
        a(I('v_xor_b32', n0, s.sOWN, n0))
        a(I('s_lshl_b32', nb, s.sCM, 6))
        a(I('v_add_u32', n0, nb, n0))
        a(I('v_lshrrev_b32', h2, 5, s.vL))
        a(I('v_lshlrev_b32', h2, 1, h2))
        a(I('s_lshl_b32', c64, s.sW, 6))
        a(I('v_add_u32', h2, c64, h2))
        a(I('v_cvt_f32_u32', cb, h2))
        msk = s.sreg('nyq', 2)
        sp = s.v()
        a(I('v_cmp_eq_u32', msk, 0, h2))
        a(I('v_and_b32', sp, 1, n0))
        a(I('v_lshlrev_b32', sp, 15, sp))
        a(I('v_or_b32', sp, 0x3f00, sp))
        pend = []
        for nq in range(2):
            n, st, ba = s.v(), s.v(), s.v()
            if nq:
                a(I('v_xor_b32', n, 32, n0))
            else:
                n = n0
            a(I('v_cvt_f32_u32', st, n))
            a(I('v_mul_f32', st, lit(1 / 512), st))
            a(I('v_mul_f32', ba, st, cb))
            for j in range(8):
                for i in range(4):
                    g, c, sn = s.sincos(st, 8 * j + (0, 1, 4, 5)[i], ba)
                    ta = s.FV[nq][j][i]
                    o += g
                    o += pend
                    pend = [I('v_cvt_pk_bf16_f32', ta, c, sn)]
                    if j == 0 and i == 0:
                        pend.append(I('v_cndmask_b32', ta, ta, sp, msk))
        o += pend
        return o

    def wt_job(s):
        A, C = [], []
        a = A.append
        t, t2, so = s.sreg(), s.sreg(), s.sreg()
        a([I('s_lshl_b32', t, s.sXCD, 3)])
        a([I('s_lshl_b32', t2, s.sCT, 8)])
        a([I('s_add_u32', t, t, t2)])
        a([I('s_lshl_b32', t2, s.sW, 1)])
        a([I('s_add_u32', t, t, t2)])
        a([I('s_mul_i32', t, t, 514)])
        a([I('s_lshl_b32', t2, s.sQ, 7)])
        a([I('s_add_u32', so, t, t2)])
        r0, r1, vo = [s.v() for _ in range(3)]
        a([I('v_lshrrev_b32', r0, 5, s.vL)])
        a([I('v_bfe_u32', r1, s.vL, 3, 2)])
        a([I('v_lshl_add_u32', r0, r1, 6, r0)])
        a([I('v_mul_u32_u24', r0, 514, r0)])
        a([I('v_and_b32', r1, 7, s.vL)])
        a([I('v_lshl_add_u32', vo, r1, 4, r0)])
        w1k = s.sreg()
        a([I('s_lshl_b32', w1k, s.sW, 10)])
        d0 = I('buffer_load_dwordx4', vo, s.dWR, so, mods=f'offen{P.nt_s} lds')
        d1 = I('buffer_load_dwordx4', vo, s.dWI, so, mods=f'offen{P.nt_s} lds')
        a([I('s_add_u32', 'm0', w1k, 4 * SLOT), d0])
        a([I('s_add_u32', 'm0', w1k, 4 * SLOT + 4096), d1])
        c = C.append
        ra, x, y, st = s.v(), s.v(), s.v(), s.sreg()
        c(I('v_lshrrev_b32', x, 2, s.vL))
        c(I('v_and_b32', y, 3, s.vL))
        c(I('v_lshlrev_b32', y, 3, y))
        c(I('v_lshl_add_u32', ra, x, 7, y))
        c(I('s_lshl_b32', st, s.sW, 5))
        c(I('s_add_u32', st, st, 4 * SLOT))
        c(I('v_add_u32', ra, st, ra))
        npre = len(C)
        rd = [[s.v('wq', 2) for _ in range(2)] for _ in range(2)]
        for hi in range(2):
            for m in range(2):
                c(I('ds_read_b64_tr_b16', rd[hi][m], ra, mods=f'offset:{hi * 2048 + m * 4096}'))
        lastrd = C[-1]
        sl, sh = s.sreg(), s.sreg()
        c(I('s_mov_b32', sl, 0x05040100))
        c(I('s_mov_b32', sh, 0x07060302))
        va, so2, fo = s.v(), s.sreg(), s.sreg()
        x, y = s.v(), s.v()
        c(I('s_lshl_b32', so2, s.sQ, 2))
        c(I('s_add_u32', so2, so2, s.sW))
        c(I('v_and_b32', x, 15, s.vL))
        c(I('v_or_b32', y, so2, x))
        c(I('v_min_u32', y, 1, y))
        c(I('v_xor_b32', y, 1, y))
        c(I('v_lshlrev_b32', y, 30, y))
        c(I('v_mul_u32_u24', x, CP, x))
        c(I('v_add_u32', x, x, y))
        c(I('v_lshrrev_b32', y, 4, s.vL))
        c(I('v_lshl_add_u32', va, y, 4, x))
        c(I('s_lshl_b32', fo, so2, 3))
        c(I('s_add_u32', fo, fo, s.sXCD))
        c(I('s_lshl_b32', fo, fo, 3))
        c(I('s_add_u32', fo, fo, s.sCT))
        c(I('s_lshl_b32', fo, fo, 2))
        c(I('s_add_u32', fo, fo, FW))
        c(I('s_mul_i32', so2, so2, 16 * CP))
        for (src, msk_, sh_, dsh) in ((s.sCT, 1, 0, 12), (s.sXCD, 0, 1, 10), (s.sCT, 0, 1, 8), (s.sXCD, 1, 0, 7)):
            z = s.sreg()
            c(I('s_and_b32', z, src, msk_) if msk_ else I('s_lshr_b32', z, src, sh_))
            c(I('s_lshl_b32', z, z, dsh))
            c(I('s_add_u32', so2, so2, z))
        c(I('s_add_u32', so2, so2, WT))
        sts = []
        for hi in range(2):
            o4 = s.v('wo', 4)
            for k in range(4):
                c(I('v_perm_b32', o4[k], rd[hi][1][k >> 1], rd[hi][0][k >> 1], (sl, sh)[k & 1]))
            sts.append(I('buffer_store_dwordx4', o4, va, s.dWS, so2, mods=f'offen offset:{hi * 64} sc1'))
        return A, d1, C[:npre], C[npre:], lastrd, sts, [WAIT(*sts), s.flag_store(fo)]

    def nyquist_job(s):
        L, C = [], []
        hid = s.sSB
        u0, vv, t, so, so2 = [s.sreg() for _ in range(5)]
        x, y, fr, fi = s.v(), s.v(), s.v('ny'), s.v('ny')
        L += [I('s_and_b32', u0, hid, 3), I('s_lshr_b32', vv, hid, 2), I('s_lshl_b32', t, u0, 4), I('s_lshl_b32', so, vv, 8),
              I('s_add_u32', so, so, t), I('s_mul_i32', so, so, 514), I('s_lshl_b32', t, s.sW, 28), I('s_add_u32', so, so, t),
              I('v_lshrrev_b32', x, 2, s.vL), I('v_and_b32', y, 3, s.vL), I('v_lshl_add_u32', x, y, 6, x), I('v_mul_u32_u24', x, 514, x),
              I('buffer_load_ushort', fr, x, s.dWR, so, mods='offen offset:512'),
              I('buffer_load_ushort', fi, x, s.dWI, so, mods='offen offset:512')]
        z = s.sreg()
        x2 = s.v()
        C += [I('s_and_b32', so2, vv, 1), I('s_lshl_b32', so2, so2, 12), I('s_lshl_b32', z, u0, 10), I('s_add_u32', so2, so2, z),
              I('s_lshr_b32', z, vv, 1), I('s_lshl_b32', z, z, 8), I('s_add_u32', so2, so2, z), I('s_add_u32', so2, so2, t),
              I('s_add_u32', so2, so2, WT), I('v_lshlrev_b32', x2, 2, s.vL), I('v_lshl_or_b32', fr, fi, 16, fr),
              I('buffer_store_dword', fr, x2, s.dWS, so2, mods='offen sc1')]
        return L, C

    def tail_setup(s):
        o = []
        a = o.append
        rp, t = s.sreg(), s.sreg()
        a(I('s_and_b32', rp, s.sCT, P.rc_mask))
        a(I('s_mul_i32', rp, rp, 7))
        a(I('s_lshr_b32', rp, rp, 2))
        a(I('s_mul_i32', t, s.sQ, P.rq))
        a(I('s_lshr_b32', t, t, 1))
        a(I('s_add_u32', rp, rp, t))
        a(I('s_mul_i32', t, s.sXCD, P.rx))
        a(I('s_lshr_b32', t, t, 2))
        a(I('s_add_u32', rp, rp, t))
        for _ in range(2):
            a(I('s_sub_u32', t, rp, 14))
            a(I('s_min_u32', rp, rp, t))
        s.sPP = []
        w14 = s.sreg()
        a(I('s_mul_i32', w14, s.sW, 14))
        for jp in range(14):
            p, z = s.sreg(f'pp{jp}'), s.sreg()
            o += [I('s_add_u32', p, rp, jp), I('s_sub_u32', z, p, 14), I('s_min_u32', p, p, z)]
            a(I('s_add_u32', p, p, w14))
            a(I('s_lshl_b32', p, p, 11))
            s.sPP.append(p)
        s.sCT128 = s.sreg('ct128')
        a(I('s_lshl_b32', s.sCT128, s.sCM, 7))
        s.sHB = s.sreg('hb')
        a(I('s_mul_i32', s.sHB, s.sSB, 2 * 112 * 1024))
        a(I('s_add_u32', s.sHB, s.sHB, HH))
        x, y = s.v(), s.v()
        s.vSW = s.v('swz')
        a(I('v_bfe_u32', x, s.vL, 4, 1))
        a(I('v_lshlrev_b32', x, 2, x))
        a(I('v_and_b32', y, 7, s.vL))
        a(I('v_xor_b32', x, x, y))
        a(I('v_lshlrev_b32', s.vSW, 4, x))
        s.vD = [s.v(f'vd{i}') for i in range(4)]
        a(I('v_lshrrev_b32', y, 3, s.vL))
        a(I('v_lshl_add_u32', s.vD[0], y, 10, s.vSW))
        for i in range(1, 4):
            a(I('v_add_u32', s.vD[i], i * 7168, s.vD[0]))
        return o

    def wd_unit(s, jp):
        if jp < 8:
            return (4, 0, 1, 2)[jp >> 1] * SLOT + (jp & 1) * 4096
        if jp == 8:
            return 3 * SLOT
        return s.wd_unit(jp - 9)

    def wd_dma(s, jp):
        so = s.sreg()
        g = [[I('s_lshl_b32', so, s.sPP[jp], 4)], [I('s_add_u32', so, so, s.sCT128)]]
        d = [I('buffer_load_dwordx4', s.vD[i], s.dWD, so, mods=f'offen offset:{i * 1024} lds') for i in range(4)]
        g.append([I('s_add_u32', 'm0', s.sLW, s.wd_unit(jp)), d[0]])
        g += [[x] for x in d[1:]]
        s.wdtok[jp] = d[-1]
        return g

    def tr_addr(s, own):
        o = []
        a = o.append
        x, y, z = s.v(), s.v(), s.v()
        r0, r1 = s.v('tra'), s.v('tra')
        a(I('v_lshrrev_b32', x, 5, s.vL))
        a(I('v_bfe_u32', y, s.vL, 2, 2))
        a(I('v_lshl_add_u32', x, x, 2, y))
        a(I('v_lshlrev_b32', x, 7, x))
        a(I('v_bfe_u32', y, s.vL, 4, 1))
        a(I('v_lshlrev_b32', y, 5, y))
        a(I('v_and_b32', z, 3, s.vL))
        a(I('v_lshl_add_u32', y, z, 3, y))
        a(I('v_bfe_u32', z, s.vL, 3, 1))
        a(I('v_lshlrev_b32', z, 6, z))
        a(I('v_xor_b32', y, y, z))
        if own:
            t = s.sreg()
            a(I('s_lshl_b32', t, s.sOWN, 1))
            a(I('v_xor_b32', y, t, y))
        a(I('v_add3_u32', r0, x, y, s.sLW))
        a(I('v_xor_b32', r1, 64, r0))
        return o, (r0, r1)

    def h_load(s, sq, j, cls='any'):
        key = (sq, j >> 1)
        g = []
        if key not in s.hso:
            so = s.sreg()
            s.hso[key] = so
            g.append(I('s_add_u32', so, s.sPP[j >> 1], s.sHB if sq == 0 else s.sHB2))
        d = s.v(f'h{sq}_', 4, cls)
        g.append(I('buffer_load_dwordx4', d, s.vL16, s.dWS, s.hso[key], mods=f'offen offset:{(j & 1) * 1024} sc1'))
        s.hfrag[(sq, j)] = d
        return g

    def yw_poll(s):
        A, B = [], []
        x, y, sy, sw = s.v(), s.v('l4'), s.sreg(), s.sreg()
        s.vL4 = y
        A.append(I('v_lshlrev_b32', y, 2, s.vL))
        A.append(I('v_and_b32', x, 127, y))
        A.append(I('s_lshr_b32', sy, s.WG, 6))
        A.append(I('s_lshl_b32', sy, sy, 7))
        A.append(I('s_add_u32', sy, sy, FY))
        A.append(I('s_lshr_b32', sw, s.WG, 4))
        A.append(I('s_lshl_b32', sw, sw, 8))
        A.append(I('s_add_u32', sw, sw, FW))
        dy, ly = s.poll_issue(x, sy)
        dw, lw = s.poll_issue(y, sw)
        A.append(ly)
        A2 = [lw]
        sc = s.sreg('col')
        s.sCOL = sc
        B.append(I('s_mul_i32', sc, s.WG, CP))
        so = s.sreg()
        B.append(I('s_lshl_b32', so, s.sW, 11))
        B.append(I('s_add_u32', so, so, sc))
        B.append(I('s_add_u32', so, so, YT))
        B.append(s.poll_check(dy, ly, 56) + s.fine(42))
        d = [I('buffer_load_dwordx4', s.vL16, s.dWS, so, mods=f'offen offset:{k * 1024} sc1 lds') for k in range(2)]
        B.append([I('s_add_u32', 'm0', s.sLW, s.wd_unit(7)), d[0], d[1]])
        s.ytok = d[1]
        B2 = B
        B = [s.poll_check(dw, lw, 57) + s.fine(43)]
        s.WF = []
        w1k = s.sreg()
        B.append(I('s_lshl_b32', w1k, s.sW, 10))
        B.append(I('s_add_u32', w1k, w1k, sc))
        for m in range(2):
            d, so3 = s.v('wf', 4), s.sreg()
            B.append(I('s_add_u32', so3, w1k, WT + m * 4096))
            B.append(I('buffer_load_dwordx4', d, s.vL16, s.dWS, so3, mods='offen sc1'))
            s.WF.append(d)
        return A, B2, A2, B

    def hflag_poll(s, base):
        A = []
        if not hasattr(s, 'vF28') or s.vF28 is None:
            s.vF28 = s.v('f28')
            A.append(I('v_min_u32', s.vF28, 27, s.vL))
            A.append(I('v_lshlrev_b32', s.vF28, 2, s.vF28))
        so = s.sreg()
        A.append(I('s_and_b32', so, s.sSB, 28))
        A.append(I('s_add_u32', so, so, s.sW))
        A.append(I('s_lshl_b32', so, so, 7))
        A.append(I('s_add_u32', so, so, base))
        d, ld = s.poll_issue(s.vF28, so)
        A.append(ld)
        return A, [s.poll_check(d, ld, 58 if base == FE else 59) + s.fine(45 if base == FE else 46)]

    def glu_epi(s, acc, G, so):
        o = []
        h = s.v('hout', 4)
        for p in range(0, 8, 2):
            for k in (p, p + 1):
                o.append(I('v_mul_f32', acc[k], G[1], acc[k]))
            for k in (p, p + 1):
                o.append(I('v_exp_f32', acc[k], acc[k]))
            for k in (p, p + 1):
                o.append(I('v_fma_f32', acc[k], acc[k], G[2], G[2]))
            for k in (p, p + 1):
                o.append(I('v_rcp_f32', acc[k], acc[k]))
            for k in (p, p + 1):
                o.append(I('v_mul_f32', acc[8 + k], acc[k], acc[8 + k]))
            o.append(I('v_cvt_pk_bf16_f32', h[p >> 1], acc[8 + p], acc[9 + p]))
        st = I('buffer_store_dwordx4', h, s.vL16, s.dWS, so, mods='offen sc1')
        o.append(st)
        return o, st

    def gemm_path(s):
        o = []
        a = o.append
        s.wdtok, s.hso, s.hfrag, s.vF28 = {}, {}, {}, None
        mt, nt, rot, t = s.sMT, s.sNT, s.sROT, s.sreg()
        sXM, sXT, sWB = s.sreg('xm'), s.sreg('xt'), s.sreg('wb')
        a(I('s_lshl_b32', sXM, mt, 18))
        a(I('s_lshl_b32', sXT, s.sW, 16))
        a(I('s_add_u32', sXT, sXT, sXM))
        a(I('s_mul_i32', sWB, s.sW, 16 * 3584))
        a(I('s_lshl_b32', t, nt, 7))
        a(I('s_add_u32', sWB, sWB, t))
        vX = [s.v(f'vx{i}') for i in range(4)]
        vG = [s.v(f'vg{i}') for i in range(2)]
        vU = [s.v(f'vu{i}') for i in range(2)]
        r8, p, x, y = s.v(), s.v(), s.v(), s.v()
        a(I('v_lshrrev_b32', r8, 3, s.vL))
        a(I('v_and_b32', p, 7, s.vL))
        a(I('v_lshrrev_b32', x, 4, s.vL))
        a(I('v_xor_b32', x, x, p))
        a(I('v_lshlrev_b32', x, 4, x))
        a(I('v_lshl_add_u32', vX[0], r8, 10, x))
        a(I('v_xor_b32', y, 64, vX[0]))
        a(I('v_add_u32', vX[1], 7168, y))
        a(I('v_add_u32', vX[2], 2 * 7168, vX[0]))
        a(I('v_add_u32', vX[3], 3 * 7168, y))
        a(I('v_bfe_u32', x, s.vL, 4, 1))
        a(I('v_lshlrev_b32', x, 1, x))
        a(I('v_xor_b32', x, x, p))
        a(I('v_lshlrev_b32', x, 4, x))
        a(I('v_mul_u32_u24', y, 3584, r8))
        a(I('v_add_u32', vG[0], x, y))
        a(I('v_add_u32', vG[1], 8 * 3584 - 1024, vG[0]))
        a(I('v_xor_b32', vU[0], 64, vG[0]))
        a(I('v_xor_b32', vU[1], 64, vG[1]))
        stok = {}

        def stage_dma(tt):
            sl = (tt % 4) * SLOT
            g = []
            if tt < 8:
                sk, sx, sw_ = s.sreg(), s.sreg(), s.sreg()
                g += [[I('s_add_u32', sk, rot, tt)], [I('s_and_b32', sk, sk, 7)], [I('s_lshl_b32', sx, sk, 7)],
                      [I('s_add_u32', sx, sx, sXT)], [I('s_mul_i32', sw_, sk, 64 * 3584)], [I('s_add_u32', sw_, sw_, sWB)]]
                d = [I('buffer_load_dwordx4', vG[i], s.dWG, sw_, mods=f'offen offset:{i * 1024}{P.nt_w} lds') for i in range(2)]
                g += [[I('s_add_u32', 'm0', s.sLW, sl + 4096), d[0]], [d[1]]]
                d = [I('buffer_load_dwordx4', vU[i], s.dWU, sw_, mods=f'offen offset:{i * 1024}{P.nt_w} lds') for i in range(2)]
                g += [[I('s_add_u32', 'm0', s.sLW, sl + 6144), d[0]], [d[1]]]
                d = [I('buffer_load_dwordx4', vX[i], s.dX, sx, mods=f'offen offset:{i * 1024}{P.nt_x} lds') for i in range(4)]
                g += [[I('s_add_u32', 'm0', s.sLW, sl), d[0]]] + [[z] for z in d[1:]]
            else:
                for e in range(2):
                    sx = s.sreg()
                    g.append([I('s_add_u32', sx, sKW[e], sUP[tt - 8])])
                    d = [I('buffer_load_dwordx4', vX[i], s.dX, sx, mods=f'offen offset:{i * 1024}{P.nt_x} lds') for i in range(4)]
                    g += [[I('s_add_u32', 'm0', s.sLW, sl + e * 4096), d[0]]] + [[z] for z in d[1:]]
            stok[tt] = d[-1]
            return g
        flat = lambda gs: [i for g in gs for i in (g if isinstance(g, list) else [g])]
        a(WAIT(*s.kloads))
        o += s.fine(5)
        o += flat(stage_dma(0))
        o += s.fine(6)
        g1 = stage_dma(1)
        o += flat(g1[:8])
        o += s.fine(7)
        o += flat(g1[8:P.n1])
        o += s.fine(12)
        o += s.after_kernarg()
        o += s.fine(13)
        if P.diag:
            o += [I('v_writelane_b32', s.vST, s.diag_regs[0][0], 62), I('v_writelane_b32', s.vST, s.diag_regs[1][0], 0)]
        vB = [[s.v(f'vb{w}{k}') for k in range(4)] for w in range(2)]
        vA = [s.v('va0'), s.v('va1')]
        row, hh, f, z = s.v(), s.v(), s.v(), s.v()
        a(I('v_and_b32', row, 31, s.vL))
        a(I('v_lshrrev_b32', hh, 5, s.vL))
        a(I('v_bfe_u32', f, s.vL, 1, 3))
        a(I('v_xor_b32', f, f, hh))
        a(I('v_lshlrev_b32', f, 4, f))
        a(I('v_lshl_add_u32', vB[0][0], row, 7, f))
        for k in range(1, 4):
            a(I('v_xor_b32', vB[0][k], 32 * k, vB[0][0]))
        for k in range(4):
            a(I('v_add_u32', vB[1][k], 65536, vB[0][k]))
        vROW16 = s.v('row16')
        a(I('v_lshlrev_b32', vROW16, 4, row))
        up, rr = s.v(), s.v()
        a(I('v_bfe_u32', up, s.vL, 4, 1))
        a(I('v_bfe_u32', rr, s.vL, 2, 2))
        a(I('v_lshl_add_u32', rr, hh, 3, rr))
        a(I('v_lshlrev_b32', rr, 7, rr))
        a(I('v_lshl_add_u32', rr, up, 11, rr))
        a(I('v_bfe_u32', z, s.vL, 3, 2))
        a(I('v_xor_b32', z, s.sW, z))
        a(I('v_lshl_add_u32', rr, z, 5, rr))
        a(I('v_and_b32', z, 3, s.vL))
        a(I('v_lshl_add_u32', rr, z, 3, rr))
        a(I('v_add_u32', vA[0], 4096, rr))
        a(I('v_add_u32', vA[1], 4096 + 65536, rr))
        SEL = s.v('sel', 4)
        a(I('v_xor_b32', z, up, s.vL))
        a(I('v_and_b32', z, 1, z))
        a(I('v_add_u32', z, -1, z))
        for k in range(4):
            a(I('v_and_b32', SEL[k], 0x3f803f80, z))
        sKW = [s.sreg('kw0'), s.sreg('kw1')]
        qc = Queue('const')
        for e in range(2):
            qc.addeach([I('s_lshl_b32', sKW[e], s.sW, 1), I('s_add_u32', sKW[e], sKW[e], rot), I('s_add_u32', sKW[e], sKW[e], e),
                        I('s_and_b32', sKW[e], sKW[e], 7), I('s_lshl_b32', sKW[e], sKW[e], 7), I('s_add_u32', sKW[e], sKW[e], sXM),
                        I('s_add_u32', sKW[e], sKW[e], 32768)])
        sUP = [s.sreg(f'up{u}') for u in range(4)]
        for u in range(4):
            qc.addeach([I('s_and_b32', sUP[u], s.sCT, P.ru_mask), I('s_add_u32', sUP[u], sUP[u], u), I('s_and_b32', sUP[u], sUP[u], 3), I('s_lshl_b32', sUP[u], sUP[u], 16)])
        qc.addeach(s.own_xor() + s.lane_floats() + s.consts_p2())
        for g in s.tail_setup():
            qc.add(g)
        n = 0
        rest = list(g1[P.n1:])
        while n < P.npre and qc.items:
            it = qc.items.pop(0)
            o += it.insts
            n += it.cost
            if len(rest) > 4 and n >= P.n1_at:
                o += flat(rest[:-4])
                rest = rest[-4:]
        o += s.fine(14)
        o += flat(rest)
        o += flat(s.stamp(1))

        def xaddr(slot, off):
            ad = slot * SLOT + off
            return ad >> 16, ad & 0xffff
        acc = [s.v(f'acc{i}', 16) for i in range(8)]
        AF = [s.v(f'af{k}', 4, 'a') for k in range(32)]
        CS = s.v('cs', 4)

        def reads1(k):
            tt, ks = k >> 2, k & 3
            g = []
            w, off = xaddr(tt % 4, ks * 8192)
            g.append(I('ds_read_b64_tr_b16', AF[k][0:2], vA[w], mods=f'offset:{off}'))
            g.append(I('ds_read_b64_tr_b16', AF[k][2:4], vA[w], mods=f'offset:{off + 512}'))
            bs = []
            for i in range(4):
                b = s.v('bf', 4)
                w, off = xaddr(tt % 4, i * 8192)
                g.insert(1 + (i > 0) + i, I('ds_read_b128', b, vB[w][ks], mods=f'offset:{off}'))
                bs.append(b)
            return g, bs
        a(WAIT(stok[0], s.ldE))
        a(I('s_barrier'))
        g, bs = reads1(0)
        o += g
        o += flat(s.stamp(2))
        qr, qd, qm = Queue('rd'), Queue('dma'), Queue('misc')
        beats = []
        s.pace(qd, stage_dma(2), 0, 14)
        qm.addeach(s.tag_setup(), 0, 20)
        wA, wdma, wC0, wC, wrd, wst, wF = s.wt_job()
        for k in range(32):
            b0 = 5 * k
            for i in range(4):
                beats.append(([WAIT(*g)] if i == 0 else []) + [I('v_mfma_f32_32x32x16_bf16', acc[i], AF[k], bs[i], acc[i] if k else 0)])
            beats.append([I('v_mfma_f32_16x16x32_bf16', CS, SEL, AF[k], CS if k else 0)])
            if k < 31:
                if (k & 3) == 3:
                    tt = (k >> 2) + 1
                    qr.add(s.fine(16 + 2 * tt) + [WAIT(stok[tt]), I('s_barrier')] + ([I('comment', 'code prefetch landed', extra_use=s.keep)] if tt == 1 else []) + s.fine(17 + 2 * tt), b0, b0)
                    gs = stage_dma(tt + 2)
                    if tt == P.wt_bar:
                        gs = wA + gs
                    if tt == P.wdt_bar:
                        tv, ts, s.vWT = s.v(), s.sreg(), s.v('touch')
                        gs = [[I('v_and_b32', tv, 15, s.vL)], [I('v_lshlrev_b32', tv, 7, tv)], [I('s_lshl_b32', ts, nt, 3)], [I('s_add_u32', ts, ts, mt)],
                              [I('s_lshl_b32', ts, ts, 2)], [I('s_add_u32', ts, ts, s.sW)], [I('s_lshl_b32', ts, ts, 11)],
                              [I('buffer_load_dword', s.vWT, tv, s.dWD, ts, mods='offen')]] + gs
                    s.pace(qd, gs, b0, 19)
                g, bs = reads1(k + 1)
                for n, x_ in enumerate(g):
                    qr.add(x_, b0, b0 + (1 if n < 4 else 2))
        G, Gld = [None] * 8, [None] * 8

        def stat_load(ti):
            so = s.sreg()
            d, ld = s.poll_issue(vROW16, so, 4, 'stat')
            G[ti], Gld[ti] = d, ld
            if ti < 4:
                return [I('s_add_u32', so, sST, ti * 1024), ld]
            return [I('s_lshr_b32', so, sUP[ti - 4], 6), I('s_add_u32', so, so, sST), I('s_add_u32', so, so, 512), ld]
        qm.addeach(wC0 + wC[4:-8], 60, 150)
        sST = s.sreg('st')
        qm.addeach([I('s_lshl_b32', sST, mt, 12), I('s_add_u32', sST, sST, STATS)], P.stat_load - 4, P.stat_load)
        for ti in range(P.nstat1):
            qm.addeach(stat_load(ti), P.stat_load, P.stat_load + 8)
        BF = {}

        def read2(u, k):
            b = s.v('bf', 4)
            w, off = xaddr((8 + u) % 4, (k >> 2) * 4096)
            BF[(u, k)] = b
            return I('ds_read_b128', b, vB[w][k & 3], mods=f'offset:{off}')
        qr.add(s.fine(32) + [WAIT(stok[8]), I('s_barrier')] + ([I('comment', 'landed', extra_use=[s.vWT])] if P.wdt_bar else []) + s.fine(33), 155, 155)
        RD = {}
        for k in range(7):
            RD[(0, k)] = read2(0, k)
            qr.add(RD[(0, k)], 155 + k // 2, 156 + k // 2)
        o += s.abl(1, weave(beats, [qr, qd, qm, qc], cap=P.cap))
        assert not qr.items and not qd.items and not qm.items, (len(qr.items), len(qd.items), len(qm.items))
        print('const slots left after first pass:', sum(i.cost for i in qc.items), file=sys.stderr)
        o += drain([qc])
        o += flat(s.stamp(3))
        qr, qd, qe, qm = Queue('rd'), Queue('dma'), Queue('epi'), Queue('misc')
        beats = []
        CA = s.v('csa', 4)
        MB = [s.v('mb', 4), s.v('mb', 4)]
        pre = []
        for k in range(1, 4):
            pre += [I('v_mov_b32', CA[k], 0), I('v_mov_b32', MB[0][k], 0), I('v_mov_b32', MB[1][k], 0)]
        mU, mH = s.sreg('mu', 2), s.sreg('mh', 2)
        c0, c1, c2 = s.v(), s.v(), s.v()
        pre += [I('s_mov_b32', mU[0], 0xffff0000), I('s_mov_b32', mU[1], 0xffff0000), I('s_mov_b32', mH[0], 0), I('s_mov_b32', mH[1], -1)]
        qe.addeach(pre, 0, 3)
        qe.addeach([I('v_cndmask_b32', c0, CS[0], CS[1], mU), I('v_cvt_pk_bf16_f32', c1, c0, c0), I('v_and_b32', c2, 0xffff0000, c1),
                    I('v_sub_f32', c0, c0, c2), I('v_cvt_pk_bf16_f32', c0, c0, c0), I('v_cndmask_b32', CA[0], c1, c0, mH)], 1, 4)
        sHS = s.sreg('hs')
        t = s.sreg()
        qm.addeach([I('s_mul_i32', sHS, mt, 8 * 112), I('s_lshl_b32', t, nt, 2), I('s_add_u32', sHS, sHS, t),
                    I('s_add_u32', sHS, sHS, s.sW), I('s_lshl_b32', sHS, sHS, 10), I('s_add_u32', sHS, sHS, HH)], 0, 8)
        sFE = s.sreg('fe')
        t2 = s.sreg()
        qm.addeach([I('s_lshl_b32', sFE, mt, 2), I('s_lshr_b32', t2, s.sXCD, 1), I('s_add_u32', sFE, sFE, t2), I('s_lshl_b32', sFE, sFE, 3),
                    I('s_add_u32', sFE, sFE, s.sCT), I('s_lshl_b32', sFE, sFE, 2), I('s_add_u32', sFE, sFE, s.sW),
                    I('s_lshl_b32', sFE, sFE, 2), I('s_add_u32', sFE, sFE, FE)], 8, 40)
        s.sFE = sFE
        ncorr = [0]
        hst, hsg = {}, {}

        def corr(ti, at):
            mb = MB[ncorr[0] & 1]
            ncorr[0] += 1
            qe.add(s.poll_check(G[ti], Gld[ti], 48 + ti), max(0, at - 3), at - 2)
            qe.add(I('v_mov_b32', mb[0], G[ti][0]), max(0, at - 3), at - 2)
            return [I('v_mfma_f32_32x32x16_bf16', acc[ti], CA, mb, acc[ti])]

        def epi(ti, t0, t1, q):
            so = s.sreg()
            e, st = s.glu_epi(acc[ti], G[ti], so)
            q.addeach(e[:-1], t0, t1)
            if ti < 4:
                hsg[ti] = [I('s_add_u32', so, sHS, 2 * ti * 112 * 1024), st]
            else:
                hsg[ti] = [I('s_lshr_b32', so, sUP[ti - 4], 5), I('s_mul_i32', so, so, 112), I('s_add_u32', so, so, sHS),
                           I('s_add_u32', so, so, 112 * 1024), st]
            hst[ti] = st
        qe2 = Queue('epi2')
        for ti in range(P.nstat1, 8):
            qm.addeach(stat_load(ti), P.stat2, P.stat2 + 6)
        start = {}
        for u in range(4):
            start[u] = len(beats)
            for k in range(32):
                bi = len(beats)
                beats.append(([WAIT(RD[(u, k + 3)])] if (k & 3) == 0 else []) +
                             [I('v_mfma_f32_32x32x16_bf16', acc[4 + u], AF[k], BF[(u, k)], acc[4 + u] if k else 0)])
                if k + 7 < 32:
                    RD[(u, k + 7)] = read2(u, k + 7)
                    qr.add(RD[(u, k + 7)], bi, bi)
                elif u < 3 and k >= 28:
                    if k == 28:
                        qr.add(s.fine(34 + 2 * u) + [WAIT(stok[9 + u], *([wrd] if u == 0 else [])), I('s_barrier')] + s.fine(35 + 2 * u), bi, bi)
                    for kk in range(2 * (k - 28), min(7, 2 * (k - 28) + 2)):
                        RD[(u + 1, kk)] = read2(u + 1, kk)
                        qr.add(RD[(u + 1, kk)], bi, bi)
                if u == 0 and k in (6, 8, 10, 12):
                    ti = (k - 6) // 2
                    beats.append(corr(ti, len(beats)))
                    epi(ti, len(beats) + 2, P.epi_dead[ti], qe2)
            beats.append(corr(4 + u, len(beats)))
            if u < 3:
                epi(4 + u, len(beats) + 2, P.epi_dead[4 + u], qe2)
            if u == 0:
                pass
            gs = []
            if u < 2:
                gs += stage_dma(10 + u)
            for jp in P.wd_plan[u]:
                gs += s.wd_dma(jp)
            t0 = start[u] - (4 if u else 0)
            if gs:
                s.pace(qd, gs, t0, P.wd_span[u])
        for ti in range(4):
            tq = P.epi_dead[3 if P.bunch else ti]
            qm.addeach(hsg[ti], tq + 1, tq + 3)
        qm.add(s.fine(40), P.epi_dead[3] + 3, P.epi_dead[3] + 3)
        qm.add([WAIT(*[hst[k] for k in range(4)]), s.flag_store(sFE)] + s.fine(41), P.eflag, P.eflag)
        for ti in range(4, 4 + P.nmid):
            tq = max(P.eflag, P.epi_dead[ti]) if P.bunch else P.epi_dead[ti]
            qm.addeach(hsg[ti], tq + 1, tq + 3)
        qw = Queue('wt')
        qw.addeach(wC[:4], 0, 1)
        qw.addeach(wC[-8:] + wst, 4, P.wst_at)
        qm.add(wF + s.fine(44), P.wflag, P.wflag)
        qm.sort()
        qp = Queue('poll')
        pa, pb, pa2, pb2 = s.yw_poll()
        ea, eb = s.hflag_poll(FE)
        for tt, gs, sp in sorted([(P.poll_y, pa, 6), (P.poll_e, ea, 6), (P.poll_w, pa2, 1), (P.chk_y + 12, pb, 12), (P.chk_w + 4, pb2, 4)], key=lambda e: e[0] - e[2]):
            for g in gs:
                qp.add(g, tt - sp, tt)
        o += s.abl(2, weave(beats, [qr, qe, qd, qw, qm, qe2, qp], cap=P.cap))
        o += drain([qr, qe, qd, qw, qm, qe2, qp])
        o += flat(s.stamp(4))
        q3 = Queue()
        epi(7, 0, 0, q3)
        extra = [(it.insts, 0, 5000) for it in q3.items]
        for ti in range(4 + P.nmid, 8):
            extra += [([x], 0, 5000) for x in hsg[ti]]
        sFL = s.sreg()
        late = [I('s_add_u32', sFL, sFE, FL - FE), WAIT(*[hst[k] for k in range(4, 8)]), s.flag_store(sFL)]
        o += s.tail(extra, eb, late)
        return o

    def helper_path(s):
        o = []
        a = o.append
        s.wdtok, s.hso, s.hfrag, s.vF28 = {}, {}, {}, None
        flat = lambda gs: [i for g in gs for i in (g if isinstance(g, list) else [g])]
        a(I('label', 'L_helper'))
        t4, bh, rb, t = s.sreg('t4'), s.sreg('bh'), s.sreg('rb'), s.sreg()
        hid = s.sSB
        a(I('s_lshr_b32', t4, hid, 1))
        a(I('s_and_b32', bh, hid, 1))
        a(I('s_lshl_b32', rb, t4, 7))
        a(I('s_lshl_b32', t, bh, 4))
        a(I('s_add_u32', rb, rb, t))
        a(I('s_lshr_b32', t, s.sW, 1))
        a(I('s_lshl_b32', t, t, 3))
        a(I('s_add_u32', rb, rb, t))
        a(I('s_and_b32', t, s.sW, 1))
        a(I('s_lshl_b32', t, t, 1))
        a(I('s_add_u32', rb, rb, t))
        rbb, lx = s.sreg(), s.sreg('lx')
        a(I('s_lshl_b32', rbb, rb, 10))
        a(I('s_lshl_b32', lx, s.sW, 14))
        a(WAIT(*s.kloads))
        xd = []
        groups = [[], []]
        for par in (1, 0):
            for bb in range(4):
                for i in (par, par + 2):
                    rho = 4 * bb + i
                    vo, so = s.v(), s.sreg()
                    g = [I('v_xor_b32', vo, rho * 16, s.vL16), I('s_add_u32', so, rbb, (4 * (bb >> 1) + (bb & 1) + 32 * i) * 1024 - i * 1024)]
                    if i < 2:
                        g.append(I('s_add_u32', 'm0', lx, bb * 4096))
                    d = I('buffer_load_dwordx4', vo, s.dX, so, mods=f'offen offset:{i * 1024} lds')
                    g.append(d)
                    xd.append(d)
                    groups[par] += g
        o += groups[1]
        tv, ts, td = s.v(), s.sreg(), s.v('touch')
        a(I('v_and_b32', tv, 31, s.vL))
        a(I('v_lshlrev_b32', tv, 10, tv))
        a(I('s_and_b32', ts, s.sROT, 7))
        a(I('s_lshl_b32', ts, ts, 7))
        a(I('s_lshl_b32', t, s.sMT, 18))
        a(I('s_add_u32', ts, ts, t))
        a(I('s_lshl_b32', t, s.sW, 16))
        a(I('s_add_u32', ts, ts, t))
        a(I('buffer_load_dword', td, tv, s.dX, ts, mods='offen'))
        o += s.after_kernarg()
        if P.diag:
            o += [I('v_writelane_b32', s.vST, s.diag_regs[0][0], 62), I('v_writelane_b32', s.vST, s.diag_regs[1][0], 0)]
        k1, q, fk, fq4 = s.v(), s.v(), s.v(), s.v()
        a(I('v_and_b32', k1, 15, s.vL))
        a(I('v_lshrrev_b32', q, 4, s.vL))
        a(I('v_cvt_f32_u32', fk, k1))
        a(I('v_cvt_f32_u32', fq4, q))
        a(I('v_mul_f32', fq4, 4.0, fq4))
        m0_, m8 = s.sreg('m0', 2), s.sreg('m8', 2)
        a(I('v_cmp_eq_u32', m0_, 0, k1))
        a(I('v_cmp_lt_u32', m8, 7, k1))
        BC, BS = s.v('bc', 4), s.v('bs', 4)
        st, ba, st2, ba2, z = s.v(), s.v(), s.v(), s.v(), s.v()
        a(I('v_mul_f32', st, lit(1 / 32), fk))
        a(I('v_mul_f32', ba, st, fq4))
        a(I('v_mov_b32', z, 0.5))
        a(I('v_cndmask_b32', st2, st, z, m0_))
        a(I('v_mov_b32', z, lit(0.25)))
        a(I('v_cndmask_b32', z, z, 0, m0_))
        a(I('v_fma_f32', ba2, st2, fq4, z))
        for (stp, bas, dst) in ((st, ba, BC), (st2, ba2, BS)):
            for j in range(4):
                cs = []
                for e in range(2):
                    k = (0, 2, 16, 18)[j] + e
                    p, c = s.v(), s.v()
                    if k:
                        a(I('v_fmamk_f32', p, stp, lit(k), bas))
                    else:
                        p = bas
                    a(I('v_cos_f32', c, p))
                    cs.append(c)
                a(I('v_cvt_pk_bf16_f32', dst[j], cs[0], cs[1]))
        TC, TS = s.v('tc', 4), s.v('ts', 4)
        st, ba = s.v(), s.v()
        a(I('v_mul_f32', st, lit(1 / 512), fk))
        a(I('v_mul_f32', ba, st, fq4))
        for r in range(4):
            p = s.v()
            if r:
                a(I('v_fmamk_f32', p, st, lit(r), ba))
            else:
                p = ba
            a(I('v_cos_f32', TC[r], p))
            a(I('v_sin_f32', TS[r], p))
        ARE, AIM, SRE, SIM = s.v('are', 4), s.v('aim', 4), s.v('sre', 4), s.v('sim', 4)
        st, ba, sg = s.v(), s.v(), s.v()
        a(I('v_mul_f32', st, lit(1 / 16), fk))
        a(I('v_mul_f32', ba, st, fq4))
        a(I('v_mov_b32', z, -1.0))
        a(I('v_cndmask_b32', sg, 1.0, z, m8))
        for r in range(4):
            g, c, sn = s.sincos(st, r, ba)
            o += g
            c2, s2 = s.v(), s.v()
            a(I('v_cvt_pk_bf16_f32', ARE[r], c, sn))
            a(I('v_mul_f32', c2, sg, c))
            a(I('v_mul_f32', s2, sg, sn))
            a(I('v_cvt_pk_bf16_f32', AIM[r], neg(s2), c2))
        st, ba, sh, kk = s.v(), s.v(), s.v(), s.v()
        a(I('v_lshlrev_b32', kk, 5, k1))
        a(I('v_add_u32', z, -240, kk))
        a(I('v_cndmask_b32', kk, kk, z, m8))
        vCSP = s.v('csp')
        a(I('v_mov_b32', sh, 256))
        a(I('v_cndmask_b32', kk, kk, sh, m0_))
        a(I('v_cvt_f32_u32', st, kk))
        a(I('v_mul_f32', st, lit(1 / 512), st))
        a(I('v_mul_f32', ba, st, fq4))
        a(I('v_cndmask_b32', sh, 0, 16, m8))
        for r in range(4):
            g, c, sn = s.sincos(st, r, ba)
            o += g
            a(I('v_cvt_pk_bf16_f32', c, c, 0))
            a(I('v_cvt_pk_bf16_f32', sn, neg(sn), 0))
            a(I('v_lshlrev_b32', SRE[r], sh, c))
            a(I('v_lshlrev_b32', SIM[r], sh, sn))
        ONE = s.v('one', 4)
        for k in range(4):
            a(I('v_mov_b32', ONE[k], 0x3f803f80))
        o += groups[0]
        vS = [s.v(f'vs{k}') for k in range(4)]
        x, y = s.v(), s.v()
        a(I('v_xor_b32', x, q, k1))
        a(I('v_lshlrev_b32', x, 4, x))
        a(I('v_lshl_add_u32', x, k1, 10, x))
        a(I('v_add_u32', vS[0], lx, x))
        for k in range(1, 4):
            a(I('v_xor_b32', vS[k], 64 * k, vS[0]))
        vT = s.v('vt')
        a(I('v_lshlrev_b32', vT, 3, s.vL))
        a(I('v_add_u32', vT, lx, vT))
        tg = s.tag_setup()
        wA, wdma, wC0, wC, wrd, wst, wF = s.wt_job()
        nL, nC = s.nyquist_job()
        tw, tso = s.v(), s.sreg()
        a(I('v_lshlrev_b32', tw, 7, s.vL))
        a(I('s_lshl_b32', tso, hid, 2))
        a(I('s_add_u32', tso, tso, s.sW))
        a(I('s_mul_i32', tso, tso, 14336))
        pre_vm = []
        wl = flat(wA) + nL
        o += [x_ for x_ in wl if x_.kind not in ('dma', 'vld') and 'm0' not in x_.defs]
        vm_first = [x_ for x_ in wl if x_.kind in ('dma', 'vld') or 'm0' in x_.defs]
        tsf = s.sreg()
        a(I('s_lshl_b32', tsf, hid, 2))
        a(I('s_add_u32', tsf, tsf, s.sW))
        a(I('s_mul_i32', tsf, tsf, 8224))
        tw2, tso2 = s.v(), s.sreg()
        a(I('v_lshlrev_b32', tw2, 10, s.vL))
        a(I('s_lshl_b32', tso2, s.sQ, 2))
        a(I('s_add_u32', tso2, tso2, s.sW))
        a(I('s_mul_i32', tso2, tso2, 112 * 1024))
        a(I('s_lshl_b32', t, s.sCM, 7))
        a(I('s_add_u32', tso2, tso2, t))
        for (vv_, sb_, st_) in ((tw2, tso2, 48 * 1024), (tw, tso, 6144)):
            for k in range(2):
                s.keep.append(s.v('touch'))
                ts2 = s.sreg()
                pre_vm.append([I('s_add_u32', ts2, sb_, st_ * k), I('buffer_load_dword', s.keep[-1], vv_, s.dWD, ts2, mods='offen')])
        for d in (s.dWR, s.dWI):
            s.keep.append(s.v('touch'))
            pre_vm.append([I('buffer_load_dword', s.keep[-1], tw, d, tsf, mods='offen')])
        YB = 2 * SLOT
        vW = [s.v(f'vw{r}') for r in range(4)]
        mq2 = s.sreg('mq2', 2)
        cc, c15, ub = s.v(), s.v(), s.sreg('ub')
        a(I('v_cmp_lt_u32', mq2, 1, q))
        a(I('v_lshl_add_u32', cc, q, 7, k1))
        a(I('v_sub_u32', z, 512, cc))
        a(I('v_cndmask_b32', cc, cc, z, mq2))
        a(I('v_and_b32', c15, 15, cc))
        a(I('s_lshl_b32', ub, s.sW, 1))
        a(I('v_xor_b32', c15, ub, c15))
        a(I('v_lshlrev_b32', c15, 4, c15))
        a(I('v_lshl_add_u32', cc, cc, 8, c15))
        a(I('v_add_u32', cc, YB, cc))
        stp, dum = s.v(), s.v()
        a(I('v_mov_b32', z, -8192))
        a(I('v_mov_b32', stp, 8192))
        a(I('v_cndmask_b32', stp, stp, z, mq2))
        a(I('v_add_u32', dum, 4 * SLOT + 16384, s.vL16))
        for r in range(4):
            if r:
                a(I('v_add_u32', cc, cc, stp))
            a(I('v_cndmask_b32', vW[r], cc, dum, m0_))
        a(I('v_lshlrev_b32', x, 7, q))
        a(I('v_add_u32', z, -240, x))
        a(I('v_cndmask_b32', x, x, z, mq2))
        a(I('v_lshlrev_b32', x, 8, x))
        a(I('v_and_b32', z, 7, k1))
        a(I('v_lshl_add_u32', x, z, 2, x))
        a(I('v_and_b32', z, 8, k1))
        a(I('v_lshl_add_u32', x, z, 4, x))
        a(I('s_lshl_b32', t, ub, 4))
        a(I('s_add_u32', t, t, YB))
        a(I('v_add_u32', vCSP, t, x))
        vSPW, vSPR = s.v('spw'), s.v('spr')
        a(I('s_lshl_b32', t, s.sW, 10))
        a(I('s_add_u32', t, t, 4 * SLOT + 20480))
        a(I('v_add_u32', vSPR, t, s.vL16))
        a(I('v_cndmask_b32', vSPW, dum, vSPR, m0_))
        vRd = [s.v('yr'), s.v('yr')]
        vGo, sy = s.v('ygo'), s.sreg('sy')
        a(I('v_lshrrev_b32', y, 3, s.vL))
        a(I('v_xor_b32', x, y, s.vL))
        a(I('v_and_b32', x, 7, x))
        a(I('v_lshlrev_b32', x, 4, x))
        a(I('v_lshl_add_u32', x, y, 8, x))
        a(I('s_add_u32', t, lx, YB))
        a(I('v_add_u32', vRd[0], t, x))
        a(I('v_xor_b32', vRd[1], 128, vRd[0]))
        a(I('v_mul_u32_u24', y, CP, y))
        a(I('v_and_b32', x, 7, s.vL))
        a(I('v_lshl_add_u32', vGo, x, 4, y))
        a(I('s_mul_i32', sy, s.sW, 64 * CP))
        a(I('s_lshr_b32', t, t4, 2))
        a(I('s_lshl_b32', t, t, 11))
        a(I('s_add_u32', sy, sy, t))
        a(I('s_and_b32', t, t4, 3))
        a(I('s_lshl_b32', t, t, 8))
        a(I('s_add_u32', sy, sy, t))
        a(I('s_lshl_b32', t, bh, 7))
        a(I('s_add_u32', sy, sy, t))
        fo = s.sreg('fy')
        a(I('s_lshl_b32', fo, s.sW, 5))
        a(I('s_add_u32', fo, fo, hid))
        a(I('s_lshl_b32', fo, fo, 2))
        a(I('s_add_u32', fo, fo, FY))
        o += flat(s.stamp(1))
        a(WAIT(s.ldE))
        s.keep.append(td)
        o += tg
        a(WAIT(*xd))
        o += flat(s.stamp(2))
        it = []
        DS, DQ = s.v('dsum', 4), s.v('dsq', 4)
        for ks in range(16):
            f = s.v('xf', 4)
            it.append(I('ds_read_b128', f, vS[ks & 3], mods=f'offset:{(ks >> 2) * 256}'))
            it.append(I('v_mfma_f32_16x16x32_bf16', DS, f, ONE, DS if ks else 0))
            it.append(I('v_mfma_f32_16x16x32_bf16', DQ, f, f, DQ if ks else 0))
        mk = [s.sreg('mk', 2) for _ in range(3)]
        l3 = s.v()
        it.append(I('v_and_b32', l3, 3, s.vL))
        for k in range(3):
            it.append(I('v_cmp_eq_u32', mk[k], k + 1, l3))
        sm, sq = s.v(), s.v()
        it.append(I('v_cndmask_b32', sm, DS[0], DS[1], mk[0]))
        it.append(I('v_cndmask_b32', sq, DQ[0], DQ[1], mk[0]))
        for k in (1, 2):
            it.append(I('v_cndmask_b32', sm, sm, DS[k + 1], mk[k]))
            it.append(I('v_cndmask_b32', sq, sq, DQ[k + 1], mk[k]))
        GR = s.v('gr', 4)
        vR, nm, var, hi = s.v('vr'), s.v(), s.v(), s.v()
        it.append(I('v_mul_f32', nm, lit(-1 / 512), sm))
        it.append(I('v_mul_f32', var, lit(1 / 512), sq))
        it.append(I('v_fma_f32', var, neg(nm), nm, var))
        it.append(I('v_max_f32', var, 0, var))
        it.append(I('v_add_f32', var, lit(1e-5), var))
        it.append(I('v_rsq_f32', vR, var))
        it.append(I('v_sqrt_f32', GR[2], var))
        it.append(I('v_mul_f32', GR[1], lit(-LOG2E), vR))
        it.append(I('v_cvt_pk_bf16_f32', hi, nm, nm))
        it.append(I('v_and_b32', hi, 0xffff0000, hi))
        lo = s.v()
        it.append(I('v_sub_f32', lo, nm, hi))
        it.append(I('v_cvt_pk_bf16_f32', GR[0], hi, lo))
        it.append(I('v_mov_b32', GR[3], s.sTAG))
        va, dg, so = s.v(), s.v(), s.sreg()
        it.append(I('v_bfe_u32', dg, s.vL, 2, 2))
        d3 = s.v()
        it.append(I('v_and_b32', d3, 2, dg))
        it.append(I('v_add_u32', d3, d3, dg))
        it.append(I('v_lshl_add_u32', va, l3, 5, d3))
        it.append(I('v_lshlrev_b32', va, 4, va))
        it.append(I('v_xor_b32', dg, dg, q))
        it.append(I('v_min_u32', dg, 1, dg))
        it.append(I('v_lshl_add_u32', va, dg, 30, va))
        it.append(I('s_lshl_b32', so, rb, 4))
        it.append(I('s_add_u32', so, so, STATS))
        it.append(I('buffer_store_dwordx4', GR, va, s.dWS, so, mods='offen sc1'))
        sR = [s.sreg(f'r{k}', 2) for k in range(8)]
        for rho in range(16):
            it.append(I('v_readlane_b32', sR[rho >> 1][rho & 1], vR, 20 * (rho >> 2) + (rho & 3)))
        sc, tt = listsched(it)
        print('helper stats model cycles', tt, file=sys.stderr)
        o += sc
        o += flat(s.stamp(3))
        o += vm_first
        yst = []

        def publish(hf):
            out = []
            for e in range(8):
                d, so = s.v('yb', 4), s.sreg()
                rd = I('ds_read_b128', d, vRd[(hf ^ e) & 1], mods=f'offset:{e * 2048}')
                rd.region = 'yr'
                st_ = I('buffer_store_dwordx4', d, vGo, s.dWS, so, mods='offen sc1')
                yst.append(st_)
                out.append([rd, I('s_add_u32', so, sy, YT + e * 8 * CP + hf * 1024), st_])
            return out
        halves = []
        for hf in range(2):
            it = []
            ywr = []
            for bb in (2 * hf, 2 * hf + 1):
                OUT = [s.v('yo', 4) for r in range(4)]
                for i in range(4):
                    rho = 4 * bb + i
                    ad, X = s.v(), s.v('xa', 4)
                    DR, DI, E1, E2, PB = s.v('dr', 4), s.v('di', 4), s.v('e1', 4), s.v('e2', 4), s.v('pb', 4)
                    it.append(I('v_xor_b32', ad, rho * 16, vT))
                    it.append(I('ds_read_b64_tr_b16', X[0:2], ad, mods=f'offset:{rho * 1024}'))
                    it.append(I('ds_read_b64_tr_b16', X[2:4], ad, mods=f'offset:{rho * 1024 + 512}'))
                    it.append(I('v_mfma_f32_16x16x32_bf16', DR, X, BC, 0))
                    it.append(I('v_mfma_f32_16x16x32_bf16', DI, X, BS, 0))
                    sel = 'op_sel:[0,1] op_sel_hi:[1,1]' if rho & 1 else 'op_sel_hi:[1,0]'
                    for p_ in (0, 2):
                        c, sn, tr_, ti_ = s.v('c', 2), s.v('c', 2), s.v('c', 2), s.v('c', 2)
                        it.append(I('v_pk_mul_f32', c, TC[p_:p_ + 2], sR[rho >> 1], mods=sel))
                        it.append(I('v_pk_mul_f32', sn, TS[p_:p_ + 2], sR[rho >> 1], mods=sel))
                        it.append(I('v_pk_mul_f32', tr_, DR[p_:p_ + 2], c))
                        it.append(I('v_pk_mul_f32', ti_, DI[p_:p_ + 2], c))
                        it.append(I('v_pk_fma_f32', tr_, DI[p_:p_ + 2], sn, tr_))
                        it.append(I('v_pk_fma_f32', ti_, DR[p_:p_ + 2], sn, ti_, mods='neg_lo:[1,0,0] neg_hi:[1,0,0]'))
                        for e in range(2):
                            it.append(I('v_cvt_pk_bf16_f32', PB[p_ + e], tr_[e], ti_[e]))
                    it.append(I('v_mfma_f32_16x16x32_bf16', E1, ARE, PB, 0))
                    it.append(I('v_mfma_f32_16x16x32_bf16', E2, AIM, PB, 0))
                    w_ = I('ds_write_b128', vSPW, PB, mods=f'offset:{rho * 16}')
                    w_.region = 'sp'
                    it.append(w_)
                    for r in range(4):
                        it.append(I('v_cvt_pk_bf16_f32', OUT[r][i], E1[r], E2[r]))
                for r in range(4):
                    ad = s.v()
                    if bb:
                        it.append(I('v_xor_b32', ad, (bb >> 1) * 128 + (bb & 1) * 16, vW[r]))
                    else:
                        ad = vW[r]
                    w_ = I('ds_write_b128', ad, OUT[r])
                    w_.region = 'y'
                    ywr.append(w_)
                    it.append(w_)
            SP, E1, E2 = s.v('sp', 4), s.v('e1', 4), s.v('e2', 4)
            r_ = I('ds_read_b128', SP, vSPR)
            r_.region = 'sp'
            it.append(r_)
            it.append(I('v_mfma_f32_16x16x32_bf16', E1, SRE, SP, 0))
            it.append(I('v_mfma_f32_16x16x32_bf16', E2, SIM, SP, 0))
            for r in range(4):
                pk = s.v()
                it.append(I('v_cvt_pk_bf16_f32', pk, E1[r], E2[r]))
                w_ = I('ds_write_b32', vCSP, pk, mods=f'offset:{r * 8192}')
                w_.region = 'y'
                ywr.append(w_)
                it.append(w_)
            halves.append((it, ywr))
        it = halves[0][0]
        post = []
        for n, g in enumerate(pre_vm):
            if P.touch_at[n] == -1:
                post += g
                s.keep.remove(g[-1].ops[0].r)
            elif P.touch_at[n] is not None:
                it.insert(P.touch_at[n], g)
            else:
                it.insert(0, I('comment', 'no touch', extra_def=[g[-1].ops[0]]))
        it.append([WAIT(*halves[0][1]), I('s_barrier')])
        it2 = halves[1][0]
        for n, g in enumerate(publish(0)):
            k = 6 + n * P.pub_step
            it2[k:k] = g
        sc, tt = listsched(it + it2 + nC, inorder=P.fft_win)
        print('helper fft model cycles', tt, file=sys.stderr)
        o += sc
        a(WAIT(*halves[1][1], wdma))
        a(I('s_barrier'))
        o += flat(s.stamp(4))
        sc, _ = listsched(flat(publish(1)), inorder=40)
        o += sc
        o += flat(s.stamp(5))
        o += wC0 + wC + wst
        c1 = s.own_xor() + s.lane_floats() + s.consts_p2()
        o += c1[:P.yflag_at]
        o += [WAIT(*yst), I('comment', 'prefetches landed', extra_use=s.keep), s.flag_store(fo)] + wF
        o += post
        o += flat(s.stamp(6))
        a(I('s_barrier'))
        o += c1[P.yflag_at:]
        o += flat(s.tail_setup())
        gs = []
        for jp in range(7):
            gs += s.wd_dma(jp)
        o += flat(gs)
        pa, pb, pa2, pb2 = s.yw_poll()
        ea, eb = s.hflag_poll(FE)
        o += flat(pa) + flat(pa2) + flat(pb) + flat(pb2)
        a(I('comment', 'landed', extra_use=[x_.ops[0] for x_ in post if x_.kind == 'vld']))
        o += flat(s.stamp(7))
        o += s.tail([], [[x] for x in ea] + eb, [], True)
        return o

    def windowed(s, items, win):
        out = []
        tot = 0
        k = 0
        n = len(items)
        while k < n:
            sc, t = listsched(items[k:k + win])
            out += sc
            tot += t
            k += win
        print('windowed model cycles', tot, file=sys.stderr)
        return out

    def tail(s, extra, echeck, late, helper=False):
        nh_p2 = 0 if helper else P.nh_p2
        o = []
        a = o.append
        flat = lambda gs: [i for g in gs for i in (g if isinstance(g, list) else [g])]
        if P.stop <= 1:
            o += flat([e[0] for e in extra]) + late + flat(echeck)
            return o + s.finish()
        s.sHB2 = s.sreg('hb2')
        it = []
        it.append(([WAIT(s.ytok), I('s_barrier')], 0, 6000))
        vYA = s.v('ya')
        it.append(I('v_add_u32', vYA, s.wd_unit(7), s.vL16))
        s.Y = [[None] * 4 for _ in range(2)]
        for tb in range(2):
            for ks in range(4):
                s.Y[tb][ks] = s.v('y', 4, 'any')
                it.append(I('ds_read_b128', s.Y[tb][ks], vYA, mods=f'offset:{ks * 8192 + tb * 1024}'))
        vq = []
        for jp in range(9):
            if jp not in s.wdtok and jp != 7:
                for x in s.wd_dma(jp):
                    vq.append(x)
        tt = 0
        nvm = 0
        hl = [s.h_load(0, j) for j in range(nh_p2)]
        seq = vq + ([] if helper else echeck) + hl
        for x in seq:
            isvm = any(i.kind in ('dma', 'vld') for i in x)
            it.append((x, max(0, tt - (0 if isvm else 40)), 4000))
            if isvm:
                tt += P.h_dt
                nvm += 1
                if nvm == P.extra_at:
                    it += extra
        if nvm < P.extra_at:
            it += extra
        M = 'v_mfma_f32_16x16x32_bf16'
        D1 = [[s.v('d1', 4), s.v('d1', 4)] for _ in range(2)]
        for tb in range(2):
            for ks in range(4):
                it.append(I(M, D1[tb][0], s.Y[tb][ks], s.C1A[ks], D1[tb][0] if ks else 0))
                it.append(I(M, D1[tb][1], s.Y[tb][ks], s.C1B[ks], D1[tb][1] if ks else 0))
        WR = [[s.v('wr') for _ in range(4)] for _ in range(2)]
        for m in range(2):
            for r in range(4):
                it.append(I('v_lshlrev_b32', WR[m][r], 16, s.WF[m][r]))
                it.append(I('v_and_b32', s.WF[m][r], 0xffff0000, s.WF[m][r]))

        def cmul(dr, di, c, sn, conj):
            x, y = s.v(), s.v()
            g = [I('v_mul_f32', x, dr, c), I('v_mul_f32', y, di, c)]
            if conj:
                g += [I('v_fmac_f32', x, di, sn), I('v_fma_f32', y, neg(dr), sn, y)]
            else:
                g += [I('v_fma_f32', x, neg(di), sn, x), I('v_fmac_f32', y, dr, sn)]
            return g, x, y
        PP, QQ = [s.v('p', 4) for _ in range(2)], [s.v('q', 4) for _ in range(2)]
        for tb in range(2):
            for r in range(4):
                g, x, y = cmul(D1[tb][0][r], D1[tb][1][r], *s.T1[tb][r], True)
                it += g
                it.append(I('v_cvt_pk_bf16_f32', PP[tb][r], x, y))
                it.append(I('v_cvt_pk_bf16_f32', QQ[tb][r], y, neg(x)))
        D2 = [[s.v('d2', 4), s.v('d2', 4)] for _ in range(2)]
        for tb in range(2):
            for m in range(2):
                it.append(I(M, D2[m][0], s.C2[m][tb], PP[tb], D2[m][0] if tb else 0))
                it.append(I(M, D2[m][1], s.C2[m][tb], QQ[tb], D2[m][1] if tb else 0))
        PP, QQ = [s.v('p', 4) for _ in range(2)], [s.v('q', 4) for _ in range(2)]
        for m in range(2):
            for r in range(4):
                g, x, y = cmul(D2[m][0][r], D2[m][1][r], WR[m][r], s.WF[m][r], False)
                it += g
                it.append(I('v_cvt_pk_bf16_f32', PP[m][r], x, neg(y)))
                it.append(I('v_cvt_pk_bf16_f32', QQ[m][r], y, x))
        D3 = [[s.v('d3', 4), s.v('d3', 4)] for _ in range(2)]
        for m in range(2):
            for n in range(2):
                it.append(I(M, D3[n][0], PP[m], s.C2[n][m], D3[n][0] if m else 0))
                it.append(I(M, D3[n][1], QQ[m], s.C2[n][m], D3[n][1] if m else 0))
        XB = 3 * SLOT + 4096
        vXW, vXR = s.v('xw'), s.v('xr')
        t = s.sreg()
        it.append(I('s_add_u32', t, s.sLW, XB))
        it.append(I('v_add_u32', vXW, t, s.vL16))
        it.append(I('v_add_u32', vXR, XB, s.vL16))
        ws = []
        for n in range(2):
            U = s.v('u', 4)
            for r in range(4):
                g, x, y = cmul(D3[n][0][r], D3[n][1][r], *s.T3[n][r], False)
                it += g
                it.append(I('v_cvt_pk_bf16_f32', U[r], x, neg(y)))
            w_ = I('ds_write_b128', vXW, U, mods=f'offset:{n * 1024}')
            ws.append(w_)
            it.append(w_)
        it.append([WAIT(*ws), I('s_barrier')])
        D4 = [[s.v('d4', 4), s.v('d4', 4)] for _ in range(2)]
        for ks in range(4):
            for n in range(2):
                U = s.v('ux', 4)
                it.append(I('ds_read_b128', U, vXR, mods=f'offset:{ks * 8192 + n * 1024}'))
                it.append(I(M, D4[n][0], U, s.C1A[ks], D4[n][0] if ks else 0))
                it.append(I(M, D4[n][1], U, s.C1B[ks], D4[n][1] if ks else 0))
        vZ, x, y = s.v('vz'), s.v(), s.v()
        it.append(I('v_and_b32', x, 15, s.vL))
        it.append(I('v_lshrrev_b32', y, 4, s.vL))
        it.append(I('v_lshlrev_b32', y, 4, y))
        it.append(I('v_lshl_add_u32', vZ, x, 6, y))
        zs, w1k = s.sreg(), s.sreg('w1k')
        it.append(I('s_lshl_b32', w1k, s.sW, 10))
        it.append(I('s_mul_i32', zs, s.WG, 2 * ZP))
        it.append(I('s_add_u32', zs, zs, w1k))
        zst = []
        for part in range(2):
            Z, so = s.v('z', 4), s.sreg()
            for n in range(2):
                for e in range(2):
                    it.append(I('v_cvt_pk_bf16_f32', Z[2 * n + e], D4[n][part][2 * e], D4[n][part][2 * e + 1]))
            it.append(I('s_add_u32', so, zs, ZT + part * ZP))
            st = I('buffer_store_dwordx4', Z, vZ, s.dWS, so, mods='offen sc1')
            zst.append(st)
            it.append(st)
        ta, vWA = s.tr_addr(True)
        it += ta
        win = {0: vWA}

        def wa(ad):
            w = ad >> 16
            g = []
            if w not in win:
                r = (s.v('tra'), s.v('tra'))
                g = [I('v_add_u32', r[k], w * 65536, vWA[k]) for k in range(2)]
                win[w] = r
            return g, win[w], ad & 0xffff
        WD = {}
        wdrd = {}

        def wd_read(j):
            g, r, off = wa(s.wd_unit(j >> 1) + (j & 1) * 2048)
            if (j & 1) == 0:
                g = g + [WAIT(s.wdtok[j >> 1])]
            out = [g] if g else []
            for nq in range(2):
                d = s.v('wd', 4, 'any')
                WD[(j, nq)] = d
                for e in range(2):
                    rd = I('ds_read_b64_tr_b16', d[2 * e:2 * e + 2], r[nq], mods=f'offset:{off + e * 1024}')
                    out.append([rd])
                    wdrd[j] = rd
            return out
        sc, tt = listsched(it)
        print('P2 model cycles', tt, file=sys.stderr)
        if late:
            pos = min(len(sc), P.lflag // 4)
            while sc[pos - 1].op in ('v_cmp_ne_u32', 's_add_u32', 's_cbranch_vccnz', 'wait') or sc[pos].op in ('label',):
                pos += 1
            sc = sc[:pos] + late + sc[pos:]
        o += s.abl(3, sc)
        o += flat(s.stamp(8))
        zf = s.sreg()
        zflag = [I('s_lshl_b32', zf, s.WG, 2), I('s_add_u32', zf, zf, w1k), I('s_add_u32', zf, zf, FZ)]
        if P.stop <= 2:
            o += zflag + [WAIT(*zst), s.flag_store(zf)]
            return o + s.finish()
        M32 = 'v_mfma_f32_32x32x16_bf16'
        o += flat(wd_read(0)) + flat(wd_read(1))
        OA = [[s.v(f'oa{sq}0', 16), s.v(f'oa{sq}1', 16, 'any')] for sq in range(2)]
        SA = [[s.v(f'sa{sq}0', 16), s.v(f'sa{sq}1', 16, 'any')] for sq in range(2)]
        qr, qv, qm, qx, qf = Queue('rd'), Queue('vm'), Queue('misc'), Queue('x'), Queue('finv')
        vm = []
        if helper:
            o += flat(echeck)
            for j in range(10):
                o += s.h_load(0, j)
            nh_p2 = 10
        for j in range(nh_p2, 28):
            vm.append((2 * j - P.h_lead, 0, [s.h_load(0, j)]))
        vm.append((4 * 7 - 4 - P.w_lead, 0, s.wd_dma(7)))
        pend_dma = {}
        for p_ in range(9, 14):
            pend_dma[p_] = s.wd_dma(p_)
        beats = []
        for j in range(28):
            for nq in range(2):
                beats.append([I(M32, OA[0][nq], WD[(j, nq)], s.hfrag[(0, j)], OA[0][nq] if j else 0)])
            if j + 2 < 28:
                for n, g in enumerate(wd_read(j + 2)):
                    qr.add(g, 2 * j, 2 * j + (n > 2))
            if (j & 1) and (j >> 1) + 9 < 14:
                gs = pend_dma[(j >> 1) + 9]
                gs[2] = [WAIT(wdrd[j])] + gs[2]
                vm.append((4 * ((j >> 1) + 9) - 4 - P.w_lead, 2 * j + 1, gs))
        beats[55] = beats[55] + flat(s.stamp(9))
        qm.addeach(zflag, 0, 4)
        qm.add(I('s_add_u32', s.sHB2, s.sHB, 112 * 1024), 0, 4)
        la, lb = s.hflag_poll(FL)
        vm.append((P.poll_l, P.poll_l - 2, [[x] for x in la]))
        vm.append((P.zflag, P.zflag, [[WAIT(*zst), s.flag_store(zf)]]))
        vm.append((P.chk_l, P.chk_l, lb))
        for j in range(28):
            vm.append((max(P.chk_l + 1, 56 + 2 * j - P.h_lead), P.chk_l, [s.h_load(1, j)]))
        for j in range(28):
            for nq in range(2):
                beats.append([I(M32, OA[1][nq], WD[(j, nq)], s.hfrag[(1, j)], OA[1][nq] if j else 0)])
        beats[111] = beats[111] + flat(s.stamp(10))
        vXO, vXI = [s.v('xo'), s.v('xo')], [[None] + [s.v('xi') for _ in range(3)] for _ in range(2)]
        sKS = s.sreg('ksc')
        setup = [I('v_add_u32', vXO[0], s.sLW, s.vL16), I('v_add_u32', vXO[0], 65536, vXO[0]), I('v_add_u32', vXO[1], 65536, vXO[0])]
        for k in range(2):
            for v_ in range(1, 4):
                setup.append(I('v_xor_b32', vXI[k][v_], v_ * 8192, vXO[k]))
        setup.append(I('s_mov_b32', sKS, lit(float(2048 * 512 // 2))))
        qm.addeach(setup, 40, 56)

        def exchange(accs, slot):
            k_, box = (0, (slot - 2) * SLOT) if slot < 4 else (1, 0)
            wr, rd, inn = [], [], []
            for v_ in range(1, 4):
                src = accs[v_ & 1]
                for e in range(2):
                    k = 8 * (v_ >> 1) + 4 * e
                    wr.append(I('ds_write_b128', vXO[k_], src[k:k + 4], mods=f'offset:{box + (v_ - 1) * 2048 + e * 1024}'))
            for v_ in range(1, 4):
                for e in range(2):
                    d = s.v('xin', 4)
                    rd.append(I('ds_read_b128', d, vXI[k_][v_], mods=f'offset:{box + (v_ - 1) * 2048 + e * 1024}'))
                    inn.append((e, d))
            return wr, [WAIT(*wr), I('s_barrier')], rd, inn

        def addup(acc, inn):
            return [I('v_add_f32', acc[4 * e + k], acc[4 * e + k], d[k]) for e, d in inn for k in range(4)]

        def silu(acc):
            g = []
            T = s.v('sg', 8)
            for p in range(0, 8, 2):
                for k in (p, p + 1):
                    g.append(I('v_mul_f32', T[k], lit(-LOG2E), acc[k]))
                for k in (p, p + 1):
                    g.append(I('v_exp_f32', T[k], T[k]))
                for k in (p, p + 1):
                    g.append(I('v_fma_f32', T[k], T[k], sKS, sKS))
                for k in (p, p + 1):
                    g.append(I('v_rcp_f32', T[k], T[k]))
                for k in (p, p + 1):
                    g.append(I('v_mul_f32', T[k], T[k], acc[k]))
            return g, T
        xs, t = s.sreg('xs'), s.sreg()
        vXD, x1, x2 = [s.v('xd'), s.v('xd')], s.v(), s.v()
        xa = [I('v_lshrrev_b32', x1, 3, s.vL), I('v_xor_b32', x2, x1, s.vL), I('v_and_b32', x2, 7, x2), I('v_lshlrev_b32', x2, 4, x2),
              I('v_lshl_add_u32', vXD[0], x1, 10, x2), I('v_add_u32', vXD[1], 7168, vXD[0]),
              I('s_lshl_b32', xs, s.sSB, 16), I('s_add_u32', xs, xs, s.sCT128),
              I('s_lshl_b32', t, s.sW, 14), I('s_add_u32', t, t, xs)]
        xd = [I('buffer_load_dwordx4', vXD[k], s.dX, t, mods=f'offen offset:{k * 1024} lds') for k in range(2)]
        vm.append((P.x_at, P.x_at - 4, [[x] for x in xa] + [[I('s_add_u32', 'm0', s.sLW, 3 * SLOT + 6144), xd[0], xd[1]]]))
        wr, bar, rd, inn = exchange(OA[0], 2)
        for n, x in enumerate(wr):
            qx.add(x, 59 + 2 * n, 60 + 2 * n)
        qx.add([WAIT(xd[1])] + bar, 72, 73)
        qx.addeach(rd, 73, 76)
        vXR, XV, XF = [s.v('xr'), s.v('xr')], [[s.v('xv', 2), s.v('xv', 2)] for _ in range(2)], [s.v('xf', 8), s.v('xf', 8)]
        y1, y2, y3, t3 = s.v(), s.v(), s.v(), s.sreg()
        xr = [I('v_bfe_u32', y1, s.vL, 4, 1), I('v_lshlrev_b32', y1, 13, y1), I('v_and_b32', y2, 15, s.vL), I('v_lshl_add_u32', y1, y2, 7, y1),
              I('s_lshr_b32', t3, s.sOWN, 3), I('v_and_b32', y2, 7, s.vL), I('v_xor_b32', y2, t3, y2), I('v_lshl_add_u32', y1, y2, 4, y1),
              I('v_lshrrev_b32', y3, 5, s.vL), I('v_lshl_add_u32', y1, y3, 3, y1), I('v_add_u32', vXR[0], 3 * SLOT + 6144, y1),
              I('v_xor_b32', vXR[1], 16, vXR[0])]
        qm.addeach(xr, 44, 70)
        for k in range(2):
            for e in range(2):
                qx.add(I('ds_read_b64', XV[k][e], vXR[e], mods=f'offset:{k * 16384}'), 74, 78)
        qx.addeach(addup(OA[0][0], inn), 77, 95)
        g, G0 = silu(OA[0][0])
        qx.addeach(g, 78, 108)
        for k in range(2):
            for e in range(4):
                qx.add(I('v_lshlrev_b32', XF[k][2 * e], 16, XV[k][e >> 1][e & 1]), 80, 110)
                qx.add(I('v_and_b32', XF[k][2 * e + 1], 0xffff0000, XV[k][e >> 1][e & 1]), 80, 110)
        zp, zo, t4 = s.sreg(), s.sreg(), s.sreg()
        za = [I('s_lshr_b32', zp, s.sSB, 3), I('s_lshl_b32', zp, zp, 2), I('s_add_u32', zp, zp, s.sW), I('s_lshl_b32', zp, zp, 8),
              I('s_add_u32', zp, zp, FZ)]
        dz, lz = s.poll_issue(s.vL4, zp)
        vm.append((P.poll_z, P.poll_z - 2, [[x] for x in za + [lz]]))
        vZD = [s.v('zd') for _ in range(4)]
        y = s.v()
        zb = [I('v_lshrrev_b32', y, 3, s.vL), I('v_mul_u32_u24', y, ZP, y), I('v_add_u32', vZD[0], y, s.vSW)]
        zb += [I('v_add_u32', vZD[i], i * (8 * ZP - 1024), vZD[0]) for i in range(1, 4)]
        zb += [I('s_mul_i32', zo, s.sW, 128 * ZP), I('s_lshl_b32', t4, s.sSB, 7), I('s_add_u32', zo, zo, t4)]
        tb_, vZA = s.tr_addr(False)
        vOO, o1, o2 = s.v('ooff'), s.v(), s.v()
        XS = [s.sreg('os'), s.sreg('os')]
        oa = [I('v_and_b32', o1, 31, s.vL), I('v_lshrrev_b32', o2, 5, s.vL), I('v_lshlrev_b32', o2, 4, o2), I('v_lshl_add_u32', vOO, o1, 10, o2),
              I('s_lshl_b32', XS[0], s.sOWN, 1), I('s_add_u32', XS[0], XS[0], xs), I('s_add_u32', XS[1], XS[0], 32768)]
        qm.addeach(zb + tb_, 48, P.chk_z - 1)
        qm.addeach(oa, max(P.x_at + 1, 48), 110)
        vm.append((P.chk_z, P.chk_z, [s.poll_check(dz, lz, 60) + s.fine(47)]))
        ztok = []
        for g_ in range(4):
            so = s.sreg()
            d = [I('buffer_load_dwordx4', vZD[i], s.dWS, so, mods=f'offen offset:{i * 1024} sc1 lds') for i in range(4)]
            vm.append((max(P.chk_z + 1, 108 + 4 * g_ - P.z_lead), P.chk_z,
                       [[I('s_add_u32', so, zo, ZT + g_ * 32 * ZP)], [I('s_add_u32', 'm0', s.sLW, (g_ >> 1) * SLOT + (g_ & 1) * 4096), d[0]]] + [[x] for x in d[1:]]))
            ztok.append(d[-1])
        ZF = {}
        for j in range(8):
            for sq in range(2):
                d = s.v('zf', 4, 'any')
                ZF[(sq, j)] = d
                off = (j >> 2) * SLOT + (j & 3) * 2048
                bt = 112 + 2 * j - 4
                if sq == 0 and (j & 1) == 0:
                    qr.add([WAIT(ztok[j >> 1])], bt, bt)
                for e in range(2):
                    qr.add(I('ds_read_b64_tr_b16', d[2 * e:2 * e + 2], vZA[sq], mods=f'offset:{off + e * 1024}'), bt, bt + sq)
        cf = s.consts_finv()
        for n, x in enumerate(cf):
            qf.add(x, 0, 108 if n < len(cf) // 2 + 20 else 110)
        for n in range(16):
            sq, j = n >> 3, n & 7
            for nq in range(2):
                beats.append([I(M32, SA[sq][nq], s.FV[nq][j], ZF[(sq, j)], SA[sq][nq] if j else 0)])
        wr, bar, rd, inn = exchange(OA[1], 3)
        for n, x in enumerate(wr):
            qx.add(x, P.ol_at + n, P.ol_at + n)
        qx.add(bar, P.ol_at + 8, P.ol_at + 8)
        qx.addeach(rd, P.ol_at + 8, P.ol_at + 10)
        wr2, bar2, rd2, inn2 = exchange(SA[0], 4)
        g, G1 = silu(OA[1][0])
        qy = Queue('y')
        qy.addeach(addup(OA[1][0], inn) + g, P.ol_at + 12)
        for n, x in enumerate(wr2):
            qx.add(x, 132 + n, 132 + n)
        qx.add(bar2, 140, 140)
        qx.addeach(rd2, 140, 142)
        vm.sort(key=lambda e: (e[0], e[1]))
        tcur = 0.0
        for dl, rel, gs in vm:
            for g in gs:
                isvm = sum(i.kind in ('dma', 'vld', 'vst') for i in g)
                tcur = max(tcur, rel)
                tb0 = min(int(tcur), max(dl, rel))
                qv.add(g, tb0, tb0 + 1)
                tcur = max(tcur, tb0) if tb0 == int(tcur) else float(tb0)
                tcur += P.vm_dt * isvm
        last = 0
        for it_ in qv.items:
            it_.t0 = max(it_.t0, last)
            it_.t1 = max(it_.t1, it_.t0)
            last = it_.t0
        qm.sort()
        o += s.abl(4, weave(beats, [qv, qr, qx, qm, qy, qf], cap=P.cap))
        assert not qv.items and not qr.items and not qm.items and not qf.items
        o += flat(s.stamp(11))

        def final(k, Sacc, G, inn):
            a_ = [I('v_fmac_f32', XF[k][e], Sacc[e], G[e]) for e in range(8)]
            g = [I('v_fmac_f32', XF[k][4 * e + i], d[i], G[4 * e + i]) for e, d in inn for i in range(4)]
            O = s.v('out', 4)
            for e in range(4):
                g.append(I('v_cvt_pk_bf16_f32', O[e], XF[k][2 * e], XF[k][2 * e + 1]))
            g += [I('v_permlane32_swap_b32', O[0], O[2]), I('v_permlane32_swap_b32', O[1], O[3])]
            g.append(I('buffer_store_dwordx4', O, vOO, s.dO, XS[k], mods='offen' + P.out_mod))
            return a_, g
        it = [x_.insts for q_ in (qx, qy) for x_ in q_.items]
        wr, bar, rd, inn = exchange(SA[1], 2)
        a0, f0 = final(0, SA[0][0], G0, inn2)
        a1, f1 = final(1, SA[1][0], G1, inn)
        it = [(x, 0, 3000) for x in wr] + it + a0 + f0 + a1 + [(bar, P.fin_bar)] + rd + f1
        sc, tt = listsched(it)
        print('final model cycles', tt, file=sys.stderr)
        o += sc
        eo = s.sreg()
        o += [I('s_or_b32', eo, s.WG, s.sW), I('s_cmp_eq_u32', eo, 0), I('s_cselect_b32', eo, 0, BIG), s.flag_store(eo)]
        return o + s.finish()

    def finish(s):
        o = []
        if P.diag:
            t = s.sreg('rt', 2)
            t2 = s.sreg('rt', 2)
            m, m2 = I('s_memrealtime', t), I('s_memtime', t2)
            so, x = s.sreg(), s.v()
            o += [I('s_waitcnt', mods='vmcnt(0)'), m, m2, WAIT(m, m2), I('v_writelane_b32', s.vST, t[0], 63), I('v_writelane_b32', s.vST, t2[0], 15),
                  I('s_lshl_b32', so, s.WG, 2), I('s_add_u32', so, so, s.sW), I('s_lshl_b32', so, so, 8), I('s_add_u32', so, so, STAMPS),
                  I('v_lshlrev_b32', x, 2, s.vL), I('buffer_store_dword', s.vST, x, s.dWS, so, mods='offen')]
        o.append(I('s_endpgm'))
        return o

    def trace(s, body):
        out = []
        TR = [s.v('trace') for _ in range(5)]
        out += [I('v_mov_b32', r, 0) for r in TR]
        n = 0
        names = []
        fin = None
        for k, i in enumerate(body):
            if i.op == 's_endpgm':
                so, x = s.sreg(), s.v()
                out += [I('s_lshl_b32', so, s.WG, 2), I('s_add_u32', so, so, s.sW), I('s_mul_i32', so, so, 1280), I('s_add_u32', so, so, STAMPS + 0x100000),
                        I('v_lshlrev_b32', x, 2, s.vL)]
                out += [I('buffer_store_dword', r, x, s.dWS, so, mods=f'offen offset:{256 * j}') for j, r in enumerate(TR)]
            out.append(i)
            if (i.kind in ('dma', 'vld', 'vst') or i.op in ('s_barrier', 'wait')) and n < 320:
                if i.op == 'wait' and not any(t.kind in ('dma', 'vld', 'vst') for t in i.targets):
                    continue
                t = s.sreg('tr', 2)
                m = I('s_memtime', t)
                nxt = body[k + 1]
                out += [m, WAIT(m), I('v_writelane_b32', TR[n >> 6], t[0], n & 63)]
                d = [o for o in i.ops if isinstance(o, Sub) and o.r.cls == 's' and o.r.n == 4]
                nm = {id(s.dX): 'x', id(s.dWG): 'g', id(s.dWU): 'u', id(s.dWD): 'wd', id(s.dWS): 'ws', id(s.dWR): 'wr', id(s.dWI): 'wi', id(s.dO): 'o'}.get(id(d[0].r), '') if d else ''
                names.append(f'{i.kind if i.kind != "pseudo" and i.kind != "misc" else i.op}:{nm}' + (':' + i.ops[0].r.name if i.kind in ('vld', 'vst') else ''))
                n += 1
        open(P.trace, 'w').write('\n'.join(names))
        return out

    def build(s):
        pro = s.prologue()
        paths = []
        for fn in (s.gemm_path, s.helper_path):
            s.slow = []
            body = fn()
            if P.trace and fn == s.gemm_path:
                body = s.trace(body)
            paths.append((body, s.slow))
        shared = {}
        for i in pro:
            for d in i.defs:
                if isinstance(d, Sub) and not d.r.pinned:
                    shared[d.r.id] = d.r
        allocate(pro + [I('comment', 'x', extra_use=list(shared.values()))], s_reserved=list(range(0, 36)) + list(range(96, 100)))
        txt = []
        hv = ha = hs = 0
        for n, (body, slow) in enumerate(paths):
            check_def_before_use(pro + body)
            hi = allocate(pro + body, s_reserved=list(range(0, 36)) + list(range(96, 100)), verbose=True)
            hv, ha, hs = max(hv, hi['v']), max(ha, hi['a']), max(hs, hi['s'])
            full, nops = finalize(pro + body)
            print('path', n, 'instructions', len(full), 'hazard nops', nops, file=sys.stderr)
            if n:
                k = [i.op == 'label' and i.ops[0] == 'L_helper' for i in full].index(True)
                full = full[k:]
            txt.append(text(full))
            for sl in slow:
                txt.append(text(sl))
        hdr = open(__file__.rsplit('/', 1)[0] + '/header.txt').read()
        out = hdr + f'''; @launch grid=(256,1,1) block=(256,1,1) lds=163840
.amdgcn_target "amdgcn-amd-amdhsa--gfx950"
.text
.globl {KNAME}
.p2align 8
.type {KNAME},@function
{KNAME}:
''' + ''.join(txt) + f'''L_end:
  s_endpgm
L_codeend:
.section .rodata,"a"
.p2align 6
.amdhsa_kernel {KNAME}
  .amdhsa_next_free_vgpr 512
  .amdhsa_next_free_sgpr 102
  .amdhsa_accum_offset 256
  .amdhsa_group_segment_fixed_size 0
  .amdhsa_kernarg_size 80
  .amdhsa_user_sgpr_count 2
  .amdhsa_user_sgpr_kernarg_segment_ptr 1
  .amdhsa_system_sgpr_workgroup_id_x 1
.end_amdhsa_kernel
'''
        return out


P.probe = 0
P.probe_arg = 24
P.probe_size = 2097152
P.fine = False
P.abl = []
P.ncode = 3
P.wt_bar = 6
P.wst_at = 12
P.wflag = 44
P.touch_at = (-1, -1, None, None, None, None)
P.wdt_bar = 6
P.pub_step = 28
P.rc_mask = 0
P.rq = 0
P.ru_mask = 0
P.yflag_at = 60
P.nstat1 = 5
P.stat2 = 62
P.nmid = 1
P.h_t0 = 60
P.h_dt = 70
P.nh_p2 = 16
P.poll_y = 92
P.chk_y = 114
P.poll_w = 108
P.chk_w = 130
P.n1 = 8
P.n1_at = 300
P.fft_win = 90
P.nopoll = 0
P.trace = ''
P.cm_xor = 4
P.skip3 = False
P.rx = 7
P.nt_w = ' nt'
P.nt_x = ''
P.nt_s = ' nt'
P.rotmask = 4
P.bunch = True
P.h_lead = 24
P.w_lead = 16
P.z_lead = 20
P.vm_dt = 2.2
P.x_at = 50
P.ol_at = 116
P.fin_bar = 300
P.out_mod = ''
P.extra_at = 5
P.wd_plan = ((), (0, 1), (2, 3, 4), (5, 6))
P.wd_span = (28, 33, 33, 20)
P.epi_dead = (28, 40, 51, 61, 88, 116, 140)
P.nh_ring = 14

if __name__ == '__main__':
    outp = sys.argv[1]
    for kv in sys.argv[2:]:
        k, v = kv.split('=')
        setattr(P, k, eval(v))
    open(outp, 'w').write(Gen().build())
```

```python
import re


class R:
    cnt = 0

    def __init__(s, n=1, cls='v', name='', align=None, pin=None):
        s.n = n
        s.cls = cls
        s.name = name
        R.cnt += 1
        s.id = R.cnt
        if align is None:
            align = 1 if n == 1 else (2 if n == 2 else 4)
        s.align = align
        s.phys = None
        s.pcls = None
        if pin is not None:
            s.phys = pin
            s.pcls = cls
        s.pinned = pin is not None

    def __getitem__(s, k):
        if isinstance(k, slice):
            a = k.start or 0
            b = k.stop if k.stop is not None else s.n
            assert 0 <= a < b <= s.n, (s.name, k)
            return Sub(s, a, b - a)
        assert 0 <= k < s.n, (s.name, k)
        return Sub(s, k, 1)

    def sub(s):
        return Sub(s, 0, s.n)


class Sub:
    def __init__(s, r, off, n, neg=False):
        s.r = r
        s.off = off
        s.n = n
        s.neg = neg

    def __neg__(s):
        return Sub(s.r, s.off, s.n, not s.neg)

    def __getitem__(s, k):
        if isinstance(k, slice):
            a = k.start or 0
            b = k.stop if k.stop is not None else s.n
            return Sub(s.r, s.off + a, b - a)
        return Sub(s.r, s.off + k, 1)

    def fmt(s):
        r = s.r
        assert r.phys is not None, ('unallocated', r.name)
        p = r.phys + s.off
        t = f'{r.pcls}{p}' if s.n == 1 else f'{r.pcls}[{p}:{p + s.n - 1}]'
        return ('-' if s.neg else '') + t

    def regs(s):
        r = s.r
        return [(r.pcls, r.phys + s.off + i) for i in range(s.n)]

    def vregs(s):
        return [(s.r.id, s.off + i) for i in range(s.n)]


def neg(x):
    if isinstance(x, R):
        x = x.sub()
    return -x


SPECIAL = {'vcc': [('s', 106), ('s', 107)], 'exec': [('s', 126), ('s', 127)], 'm0': [('s', 124)],
           'vcc_lo': [('s', 106)], 'vcc_hi': [('s', 107)], 'exec_lo': [('s', 126)], 'exec_hi': [('s', 127)]}
TRANS = ('v_exp_f32', 'v_log_f32', 'v_rcp_f32', 'v_rsq_f32', 'v_sqrt_f32', 'v_sin_f32', 'v_cos_f32')


class I:
    def __init__(s, op, *ops, mods='', extra_use=(), extra_def=(), note=''):
        s.op = op
        s.ops = [o.sub() if isinstance(o, R) else o for o in ops]
        s.mods = mods
        s.note = note
        s.extra_use = [o.sub() if isinstance(o, R) else o for o in extra_use]
        s.extra_def = [o.sub() if isinstance(o, R) else o for o in extra_def]
        s.classify()

    def classify(s):
        op = s.op
        ops = s.ops
        k = None
        d, u = [], []
        if op.startswith('v_mfma'):
            k = 'mfma'
            s.passes = 8 if '32x32' in op else 4
            d, u = ops[:1], ops[1:]
        elif op.startswith('buffer_load') and 'lds' in s.mods.split():
            k = 'dma'
            u = ops + ['m0']
        elif op.startswith('buffer_load') or op.startswith('global_load'):
            k = 'vld'
            d, u = ops[:1], ops[1:]
        elif op.startswith('buffer_store') or op.startswith('global_store'):
            k = 'vst'
            u = ops
        elif op.startswith('ds_read') or op.startswith('ds_bpermute'):
            k = 'dsr'
            d, u = ops[:1], ops[1:]
        elif op.startswith('ds_write'):
            k = 'dsw'
            u = ops
        elif op.startswith('s_load') or op in ('s_memtime', 's_memrealtime'):
            k = 'smem'
            d, u = ops[:1], ops[1:]
        elif op in ('s_waitcnt', 's_nop', 's_barrier', 's_sleep', 's_setprio', 's_endpgm', 's_branch'):
            k = 'misc'
        elif op.startswith('s_cbranch'):
            k = 'misc'
            if 'vcc' in op:
                u = ['vcc']
        elif op.startswith('s_cmp'):
            k = 'salu'
            u = ops
        elif op.startswith('s_'):
            k = 'salu'
            d, u = ops[:1], ops[1:]
        elif op.startswith('v_permlane'):
            k = 'valu'
            d, u = ops[:2], ops[:2]
        elif op in ('v_fmac_f32', 'v_writelane_b32') or '_dpp' in op:
            k = 'valu'
            d, u = ops[:1], ops
        elif op.startswith('v_'):
            k = 'valu'
            d, u = ops[:1], ops[1:]
        elif op in ('label', 'wait', 'raw', 'comment'):
            k = 'pseudo'
        else:
            raise ValueError(op)
        s.kind = k
        s.defs = [o for o in d if isinstance(o, Sub) or o in SPECIAL] + list(s.extra_def)
        s.uses = [o for o in u if isinstance(o, Sub) or (isinstance(o, str) and o in SPECIAL)] + list(s.extra_use)
        s.trans = op in TRANS

    def cost(s):
        if s.kind == 'pseudo':
            return 1 if s.op == 'wait' else 0
        if s.trans:
            return 2
        if s.kind == 'mfma':
            return 2
        return 1

    def fmt(s):
        if s.op == 'label':
            return f'{s.ops[0]}:'
        if s.op == 'raw':
            return s.ops[0]
        if s.op == 'comment':
            return f'; {s.ops[0]}'

        def f(o):
            if isinstance(o, Sub):
                return o.fmt()
            if isinstance(o, float):
                return repr(o)
            if isinstance(o, int) and not (-16 <= o <= 64):
                return hex(o & 0xffffffff)
            return str(o)
        t = '  ' + s.op
        if s.ops:
            t += ' ' + ', '.join(f(o) for o in s.ops)
        if s.mods:
            t += ' ' + s.mods
        if s.note:
            t += '  ; ' + s.note
        return t


def pregs(lst):
    out = []
    for o in lst:
        if isinstance(o, Sub):
            out += o.regs()
        else:
            out += SPECIAL[o]
    return out


def WAIT(*insts):
    w = I('wait')
    w.targets = list(insts)
    return w


class Item:
    def __init__(s, insts, t0=0, t1=10**9):
        s.insts = insts if isinstance(insts, list) else [insts]
        s.t0 = t0
        s.t1 = t1
        s.cost = sum(i.cost() for i in s.insts)


class Queue:
    def __init__(s, name=''):
        s.items = []
        s.name = name

    def add(s, insts, t0=0, t1=10**9):
        if insts != []:
            s.items.append(Item(insts, t0, t1))

    def sort(s):
        s.items.sort(key=lambda it: it.t0)

    def addeach(s, insts, t0=0, t1=10**9):
        for i in insts:
            s.add(i, t0, t1)


def weave(main, queues, cap=6, base=0):
    out = []
    debt = 0
    for bi, beat in enumerate(main):
        i = bi + base
        out += beat
        c = 0
        for x in beat:
            if x.kind == 'mfma':
                cp = cap(i) if callable(cap) else cap
                c += cp if x.passes == 8 else (cp - 2) // 2
            else:
                c -= x.cost()
        c -= debt
        for q in queues:
            last = -1
            for n, it in enumerate(q.items):
                if it.t1 <= i:
                    last = n
            for it in q.items[:last + 1]:
                assert it.t0 <= i, ('forced before t0', q.name, i, it.t0, it.t1)
                out += it.insts
                c -= it.cost
            q.items = q.items[last + 1:]
        progress = True
        while c > 0 and progress:
            progress = False
            for q in queues:
                if q.items and q.items[0].t0 <= i and (q.items[0].cost <= c + 1):
                    it = q.items.pop(0)
                    out += it.insts
                    c -= it.cost
                    progress = True
                    break
        debt = max(0, min(-c, 2)) if c < 0 else 0
    return out


def drain(queues):
    out = []
    for q in queues:
        for it in q.items:
            out += it.insts
        q.items = []
    return out


def check_def_before_use(prog, predefined=()):
    seen = set(predefined)
    bad = 0
    for n, i in enumerate(prog):
        for o in i.uses:
            if isinstance(o, Sub) and not o.r.pinned:
                for v in o.vregs():
                    if v not in seen and o not in i.defs:
                        print('USE BEFORE DEF', n, i.op, o.r.name, v)
                        bad += 1
                        break
        for o in i.defs:
            if isinstance(o, Sub):
                seen.update(o.vregs())
    assert bad == 0
    return seen


def allocate(prog, nv=256, na=256, ns=100, s_reserved=(), v_reserved=(), verbose=False):
    first, last, regs = {}, {}, {}
    for n, i in enumerate(prog):
        for o in i.defs + i.uses:
            if isinstance(o, Sub):
                r = o.r
                regs[r.id] = r
                first.setdefault(r.id, n)
                last[r.id] = n
    busy = {'v': [-1] * nv, 'a': [-1] * na, 's': [-1] * ns}
    for p in s_reserved:
        busy['s'][p] = 10**9
    for p in v_reserved:
        busy['v'][p] = 10**9
    fixed = {'v': [], 'a': [], 's': []}
    for r in regs.values():
        if r.phys is not None:
            f0 = 0
            fixed[r.pcls].append((r.phys, r.n, f0, last[r.id] if not r.pinned else 10**9))
            for k in range(r.n):
                busy[r.pcls][r.phys + k] = max(busy[r.pcls][r.phys + k], last[r.id] if not r.pinned else 10**9)
    hi = {'v': 0, 'a': 0, 's': 0}
    for r in sorted((r for r in regs.values() if r.phys is None), key=lambda r: first[r.id]):
        order = {'v': 'v', 'a': 'a', 's': 's', 'any': 'av', 'vany': 'va'}[r.cls]
        done = False
        for c in order:
            b = busy[c]
            for p in range(0, len(b) - r.n + 1, r.align):
                if all(b[p + k] < first[r.id] for k in range(r.n)):
                    r.phys, r.pcls = p, c
                    for k in range(r.n):
                        b[p + k] = last[r.id]
                    hi[c] = max(hi[c], p + r.n)
                    done = True
                    break
            if done:
                break
        if not done:
            live = [(x.name, x.n, x.pcls) for x in regs.values() if x.phys is not None and first[x.id] <= first[r.id] <= last[x.id]]
            tot = {}
            for nm, n, c in live:
                key = (re.sub(r'\d+', '', nm), c)
                tot[key] = tot.get(key, 0) + n
            raise RuntimeError(f'out of registers for {r.name} ({r.cls}x{r.n}) at {first[r.id]}: {sorted(tot.items())}')
    if verbose:
        print('high water', hi)
    return hi


def insert_waits(prog):
    out = []
    vm = []
    lg = []
    pend = {}

    def need(insts):
        nv, nl = None, None
        for t in insts:
            if t in vm:
                c = len(vm) - 1 - vm.index(t)
                nv = c if nv is None else min(nv, c)
            if t in lg:
                if any(x.kind == 'smem' for x in lg):
                    c = 0
                else:
                    c = len(lg) - 1 - lg.index(t)
                nl = c if nl is None else min(nl, c)
        if nv is None and nl is None:
            return
        parts = []
        if nv is not None:
            nv = min(nv, 63)
            parts.append(f'vmcnt({nv})')
            del vm[:len(vm) - nv]
        if nl is not None:
            nl = min(nl, 15)
            parts.append(f'lgkmcnt({nl})')
            del lg[:len(lg) - nl]
        out.append(I('s_waitcnt', mods=' '.join(parts)))
        for k in [k for k, t in pend.items() if t not in vm and t not in lg]:
            del pend[k]

    seen = set()
    for i in prog:
        seen.add(id(i))
        if i.op == 'wait':
            for t in i.targets:
                assert id(t) in seen or getattr(t, 'removed', False), ('wait for an instruction that was not issued yet', t.op, t.mods)
            need(i.targets)
            continue
        if i.op == 's_waitcnt':
            m = re.search(r'vmcnt\((\d+)\)', i.mods)
            if m:
                del vm[:max(0, len(vm) - int(m.group(1)))]
            m = re.search(r'lgkmcnt\((\d+)\)', i.mods)
            if m and (int(m.group(1)) == 0 or not any(x.kind == 'smem' for x in lg)):
                del lg[:max(0, len(lg) - int(m.group(1)))]
            for k in [k for k, t in pend.items() if t not in vm and t not in lg]:
                del pend[k]
            out.append(i)
            continue
        t = set()
        for p in pregs(i.uses) + pregs(i.defs):
            if p in pend:
                t.add(pend[p])
        if t:
            need(list(t))
        out.append(i)
        if i.kind in ('dma', 'vld', 'vst'):
            vm.append(i)
            assert len(vm) < 200
        if i.kind in ('dsr', 'dsw', 'smem'):
            lg.append(i)
        if i.kind in ('vld', 'dsr', 'smem'):
            for p in pregs(i.defs):
                pend[p] = i
    return out


def pad_hazards(prog):
    out = []
    hist = []
    pos = 0
    nops = 0

    def states(i):
        if i.op == 's_nop':
            return int(i.ops[0]) + 1
        if i.kind == 'pseudo':
            return 0
        return 1

    for i in prog:
        if i.kind == 'pseudo':
            out.append(i)
            continue
        D = set(pregs(i.defs))
        U = set(pregs(i.uses))
        need = 0
        isvalu = i.kind == 'valu'
        for (p, ppos, pD, pU) in hist:
            dist = pos - ppos - 1
            req = 0
            if p.kind == 'valu':
                vD = {x for x in pD if x[0] != 's'}
                sD = {x for x in pD if x[0] == 's'}
                if i.kind == 'mfma' and vD & U:
                    req = max(req, 2)
                if isvalu and p.trans and vD & U:
                    req = max(req, 1)
                if p.trans and i.kind in ('vst', 'dsw', 'vld', 'dsr', 'dma') and vD & U:
                    req = max(req, 1)
                if isvalu and vD & U and ('_dpp' in i.op or i.op.startswith('v_permlane')):
                    req = max(req, 2)
                if i.op.startswith('v_read') and vD & U:
                    req = max(req, 1)
                if sD & U:
                    if isvalu:
                        req = max(req, 4 if i.op in ('v_readlane_b32', 'v_writelane_b32') else 2)
                    if i.kind in ('vld', 'vst', 'dma'):
                        req = max(req, 5)
                    if i.kind in ('salu', 'misc', 'smem'):
                        req = max(req, 1)
            if p.kind == 'salu' and ('s', 124) in pD and i.kind == 'dma':
                req = max(req, 1)
            if p.kind == 'salu' and (('s', 126) in pD or ('s', 127) in pD) and (i.kind == 'mfma' or '_dpp' in i.op):
                req = max(req, 2)
            if p.kind in ('vst', 'dsw') and ('x4' in p.op or 'x3' in p.op or 'b128' in p.op):
                data = set(pregs([p.ops[0] if p.kind == 'vst' else p.ops[1]]))
                if data & D:
                    req = max(req, 2)
            if p.kind == 'mfma':
                big = 12 if p.passes == 8 else 8
                if i.kind == 'mfma':
                    C = set(pregs([i.ops[3]])) if isinstance(i.ops[3], Sub) else set()
                    AB = set(pregs(i.ops[1:3]))
                    if pD & AB:
                        req = max(req, big)
                    if pD & C:
                        if not (C == pD and p.op == i.op):
                            req = max(req, big - 2)
                    elif pD & D:
                        req = max(req, big - 2)
                elif (pD & (U | D)):
                    req = max(req, big)
                if isvalu or i.kind in ('vld', 'dsr'):
                    pC = set(pregs([p.ops[3]])) if isinstance(p.ops[3], Sub) else set()
                    if pC & D:
                        req = max(req, 7 if p.passes == 8 else 3)
            if req - dist > need:
                need = req - dist
        if need > 0:
            nops += need
            n = need
            while n > 0:
                k = min(n, 16)
                out.append(I('s_nop', k - 1, note='hazard'))
                n -= k
            pos += need
        out.append(i)
        hist.append((i, pos, D, U))
        pos += states(i)
        hist = [h for h in hist if pos - h[1] <= 20]
    return out, nops


def finalize(prog):
    p = insert_waits(prog)
    p, nops = pad_hazards(p)
    return p, nops


def text(prog):
    return '\n'.join(i.fmt() for i in prog) + '\n'


def listsched(items, vlat=700, dslat=110, t_start=0, inorder=0):
    nodes = []
    rel = []
    boost = []
    for g in items:
        t0, bo = 0, 0
        if isinstance(g, tuple):
            g, t0, bo = (g + (0,))[:3]
        g = g if isinstance(g, list) else [g]
        nodes.append(g)
        rel.append(t0)
        boost.append(bo)
    n = len(nodes)

    def keys(lst):
        o = []
        for x in lst:
            if isinstance(x, Sub):
                o += x.vregs()
            else:
                o.append(x)
        return o
    preds = [dict() for _ in range(n)]
    lastdef, readers = {}, {}
    last_vm = None
    last_bar = None
    ds_since_bar = []
    last_dsw = {}
    dsr_since_w = {}
    owner = {}
    for k, g in enumerate(nodes):
        for i in g:
            owner[id(i)] = k

    def lat(p, c_inst, same_c):
        if p.kind == 'mfma':
            if same_c:
                return 4 * p.passes
            return 36 if p.passes == 4 else 52
        if p.kind == 'dsr':
            return dslat
        if p.kind == 'vld':
            return vlat
        if p.kind == 'smem':
            return 200
        if p.kind == 'valu' and c_inst.kind == 'mfma':
            return 12
        if p.kind == 'valu' and ('_dpp' in c_inst.op or c_inst.op.startswith('v_permlane')):
            return 12
        if p.trans:
            return 12
        return 4

    def dep(a, b, l):
        if a is not None and a != b:
            preds[b][a] = max(preds[b].get(a, 0), l)
    for k, g in enumerate(nodes):
        for i in g:
            if i.op == 'wait':
                for t in i.targets:
                    if id(t) in owner:
                        dep(owner[id(t)], k, {'dsr': dslat, 'dsw': 60}.get(t.kind, vlat))
            for u in keys(i.uses):
                if u in lastdef:
                    a, p = lastdef[u]
                    same = i.kind == 'mfma' and p.kind == 'mfma' and isinstance(i.ops[3], Sub) and u in i.ops[3].vregs() and p.op == i.op
                    dep(a, k, lat(p, i, same))
            for d in keys(i.defs):
                if d in lastdef:
                    a, p = lastdef[d]
                    if not (i.kind == 'mfma' and p.kind == 'mfma'):
                        dep(a, k, lat(p, i, False) if p.kind in ('mfma', 'dsr', 'vld') else 4)
                    else:
                        dep(a, k, 4)
                for a in readers.get(d, []):
                    dep(a, k, 4)
            for u in keys(i.uses):
                readers.setdefault(u, []).append(k)
            for d in keys(i.defs):
                lastdef[d] = (k, i)
                readers[d] = []
            if i.kind in ('vld', 'vst', 'dma'):
                dep(last_vm, k, 4)
                last_vm = k
                if i.kind == 'dma':
                    dep(last_bar, k, 4)
            if i.kind in ('dsr', 'dsw'):
                dep(last_bar, k, 4)
                ds_since_bar.append(k)
                rg = getattr(i, 'region', 0)
                dep(last_dsw.get(rg), k, 4)
                if i.kind == 'dsw':
                    for a in dsr_since_w.get(rg, []):
                        dep(a, k, 4)
                    dsr_since_w[rg] = []
                    last_dsw[rg] = k
                else:
                    dsr_since_w.setdefault(rg, []).append(k)
            if i.op == 's_barrier':
                for a in ds_since_bar:
                    dep(a, k, 4)
                dep(last_bar, k, 4)
                ds_since_bar = []
                last_bar = k
            if i.op.startswith('s_cbranch'):
                dep(last_vm, k, 4)
                last_vm = k
    dur = [sum(0 if (i.kind == 'pseudo' and i.op != 'wait') else (8 if (i.trans or i.kind == 'mfma') else 4) for i in g) for g in nodes]
    succ = [[] for _ in range(n)]
    for b in range(n):
        for a, l in preds[b].items():
            succ[a].append((b, l))
    prio = [0] * n
    for a in range(n - 1, -1, -1):
        prio[a] = max([l + prio[b] for b, l in succ[a]] + [dur[a]])
    for a in range(n - 1, -1, -1):
        for b, l in succ[a]:
            boost[a] = max(boost[a], boost[b])
    prio = [p + b for p, b in zip(prio, boost)]
    ready_t = [max(t_start, r) for r in rel]
    done = [False] * n
    lo = 0
    cnt = [len(preds[b]) for b in range(n)]
    avail = [k for k in range(n) if cnt[k] == 0]
    t = t_start
    pipe = t_start
    out = []
    while avail:
        def start(k):
            s = ready_t[k]
            if nodes[k][0].kind == 'mfma':
                s = max(s, pipe)
            if nodes[k][0].op.startswith('v_pk_'):
                s = max(s, pipe + 10)
            return s
        while lo < n and done[lo]:
            lo += 1
        pool = [k for k in avail if k < lo + inorder] if inorder else avail
        cand = [k for k in pool if start(k) <= t]
        if not cand:
            t = min(start(k) for k in pool)
            continue
        k = min(cand) if inorder else max(cand, key=lambda k: (prio[k], -k))
        avail.remove(k)
        done[k] = True
        out += nodes[k]
        tt = t
        for i in nodes[k]:
            if i.kind == 'mfma':
                tt = max(tt, pipe)
                pipe = tt + 4 * i.passes
            tt += 0 if (i.kind == 'pseudo' and i.op != 'wait') else (8 if (i.trans or i.kind == 'mfma') else 4)
        issue_last = tt - 4
        for b, l in succ[k]:
            ready_t[b] = max(ready_t[b], issue_last + l - (4 if nodes[k][-1].kind == 'mfma' or nodes[k][-1].trans else 0))
            cnt[b] -= 1
            if cnt[b] == 0:
                avail.append(b)
        t = tt
    assert len(out) == sum(len(g) for g in nodes)
    return out, t


def ablate(prog, pred):
    out = []
    for i in prog:
        if pred(i):
            i.removed = True
            out.append(I('comment', 'removed', extra_def=[d for d in i.defs if isinstance(d, Sub)], extra_use=[d for d in i.uses if isinstance(d, Sub)]))
        else:
            out.append(i)
    return out


def check_m0(prog):
    cur = None
    for i in prog:
        if 'm0' in i.defs:
            cur = i
        if i.kind == 'dma':
            assert getattr(i, 'm0', None) is cur, ('M0 clobbered', i.op, i.mods)


def dma_group(m0inst, dmas):
    for d in dmas:
        d.m0 = m0inst
    return [[m0inst, dmas[0]]] + [[x] for x in dmas[1:]]
```

```python
import struct
import sys
from asmlib import *

KNAME = 'recurrent_scan__spectral_gfnet__glu_gated_glu__prompt_kernel'

FW, FY, FE, FL, FZ = 0x1000, 0x2000, 0x3000, 0x4000, 0x5000
CP, ZP = 8192 + 128, 4096 + 128
STATS, WT, YT, ZT, HH, STAMPS = 0x10000, 0x100000, 0x400000, 0x800000, 0x1000000, 0x1800000
WS_SIZE = 0x2000000
BIG = 0x40000000
TAGSTEP = 0x9E3779B9
LOG2E = 1.4426950408889634
SLOT = 32768


def fl(x):
    return struct.unpack('<I', struct.pack('<f', x))[0]


def lit(x):
    return hex(fl(x))


class P:
    diag = False
    stop = 99
    npre = 240
    wt_load = 45
    stat_load = 120
    eflag = 92
    poll_e = 134
    poll_yw = 88
    chk_yw = 112
    poll_l = 10
    chk_l = 34
    lflag = 800
    zflag = 22
    poll_z = 56
    chk_z = 76
    cap = 6


class Gen:
    def __init__(s):
        s.slow = []
        s.lab = 0
        S = lambda n, pin: R(n, 's', pin=pin)
        s.KA = S(2, 0)
        s.WG = S(1, 2)
        s.dX, s.dWR, s.dWI, s.dWG, s.dWU, s.dWD, s.dO, s.dWS = [S(4, 4 + 4 * k) for k in range(8)]
        s.V0 = R(1, 'v', pin=0)
        s.nstamp = 0

    def sreg(s, name='s', n=1):
        return R(n, 's', name)

    def v(s, name='t', n=1, cls='v'):
        return R(n, cls, name)

    def stamp(s, k):
        if P.spin is not None and k == P.spin[s.role]:
            m = I('s_memrealtime', s.sSP)
            return [[m, WAIT(m)]]
        if not P.diag:
            return []
        t = s.sreg('st', 2)
        m = I('s_memtime', t)
        return [[m, WAIT(m), I('v_writelane_b32', s.vST, t[0], k)]]

    def fine(s, k):
        return [i for g in s.stamp(k) for i in g] if P.fine else []

    def abl(s, ph, prog):
        for (p, what) in P.abl:
            if p == ph:
                prog = ablate(prog, {'dma': lambda i: i.kind == 'dma', 'mfma': lambda i: i.kind == 'mfma',
                                     'valu': lambda i: i.kind == 'valu' and (i.trans or i.op in ('v_cvt_pk_bf16_f32', 'v_accvgpr_write_b32', 'v_fmamk_f32', 'v_mul_f32', 'v_fma_f32')),
                                     'dsr': lambda i: i.kind == 'dsr', 'wd': lambda i: i.kind == 'dma' and i.ops[1].r is s.dWD,
                                     'xd': lambda i: i.kind == 'dma' and i.ops[1].r is s.dX, 'st': lambda i: i.kind == 'vst' and 'x4' in i.op,
                                     'vld': lambda i: i.kind == 'vld' and i.op != 'buffer_load_dword' and i.ops[0].r.name != 'stat'}[what])
        return prog

    def pace(s, q, gs, t0, span):
        nm = sum(any(i.kind in ('dma', 'vld', 'vst') for i in g) for g in gs)
        k = 0
        for g in gs:
            t = t0 + (k * span) // nm
            if any(i.kind in ('dma', 'vld', 'vst') for i in g):
                q.add(g, t, t + 1)
                k += 1
            else:
                q.add(g, max(t0, t - 3), t + 1)

    def poll_issue(s, voff, soff, n=1, name='fl'):
        d = s.v(name, n)
        op = 'buffer_load_dword' + ('' if n == 1 else f'x{n}')
        if P.nopoll and n == 1:
            return d, I('comment', 'nopoll', extra_def=[d], extra_use=[voff, soff])
        return d, I(op, d, voff, s.dWS, soff, mods='offen sc1')

    def poll_check(s, d, ld, did=None):
        if P.nopoll:
            return [I('comment', 'nocheck', extra_use=[d])]
        s.lab += 1
        a, b = f'L_poll{s.lab}', f'L_back{s.lab}'
        tagreg = d[d.n - 1]
        br = I('s_cbranch_vccnz', a, extra_use=[ld.ops[1], ld.ops[3], s.sCNT] if isinstance(ld.ops[3], Sub) else [ld.ops[1], s.sCNT])
        s.slow.append([I('label', a), I('s_mov_b32', s.sCNT, 1), I('label', a + 'x'),
                       I('s_sleep', 2),
                       I(ld.op, *ld.ops, mods=ld.mods), I('s_waitcnt', mods='vmcnt(0)'),
                       I('v_cmp_ne_u32', 'vcc', s.sTAG, tagreg), I('s_nop', 4),
                       I('s_cbranch_vccz', b),
                       I('s_add_u32', s.sCNT, s.sCNT, 1), I('s_cmp_lt_u32', s.sCNT, 0x8000),
                       I('s_cbranch_scc1', a + 'x'), I('s_branch', b)])
        rec = []
        if P.diag and did is not None:
            rec = [I('v_writelane_b32', s.vST, s.sCNT, did), I('s_mov_b32', s.sCNT, 0)]
        return [I('v_cmp_ne_u32', 'vcc', s.sTAG, tagreg), br, I('label', b)] + rec

    def flag_store(s, soff):
        if P.nopoll > 1:
            return I('comment', 'noflag', extra_use=[soff])
        return I('buffer_store_dword', s.vTAG, s.vM0, s.dWS, soff, mods='offen sc1')

    def prologue(s):
        o = []
        a = o.append
        a(I('s_cmp_ge_u32', s.WG, 256))
        a(I('s_cbranch_scc1', 'L_end'))
        pc = s.sreg('pc', 2)
        t, u, t2 = s.v(), s.sreg(), s.v()
        s.vCT = s.v('touch')
        a(I('s_getpc_b64', pc))
        a(I('label', 'L_pc'))
        a(I('s_lshr_b32', u, s.WG, 3))
        a(I('s_mul_i32', u, u, P.ncode * 4 * 128))
        a(I('v_lshrrev_b32', t, 6, s.V0))
        a(I('v_mul_u32_u24', t, P.ncode, t))
        a(I('v_and_b32', t2, 63, s.V0))
        a(I('v_min_u32', t2, P.ncode - 1, t2))
        a(I('v_add_lshl_u32', t, t, t2, 7))
        a(I('v_add_u32', t, u, t))
        a(I('v_min_u32', t, 'L_codeend-L_pc-4', t))
        a(I('global_load_dword', s.vCT, t, pc))
        lds = []
        for d, off in ((s.dX, 0), (s.dWG, 32), (s.dWU, 40), (s.dWS, 72), (s.dWR, 8), (s.dWI, 16), (s.dWD, 48), (s.dO, 56)):
            lds.append(I('s_load_dwordx2', d[0:2], s.KA, off))
        o += lds
        if P.diag:
            s.vST = s.v('stampv')
            t = s.sreg('rt', 2)
            t2 = s.sreg('rt2', 2)
            a(I('v_mov_b32', s.vST, 0))
            m = I('s_memrealtime', t)
            m2 = I('s_memtime', t2)
            o += [m, m2]
        for d, n in ((s.dX, 2097152), (s.dWG, 1835008), (s.dWU, 1835008), (s.dWS, WS_SIZE), (s.dWR, 1052672), (s.dWI, 1052672),
                     (s.dWD, 1835008), (s.dO, 2097152)):
            a(I('s_mov_b32', d[2], n))
            a(I('s_mov_b32', d[3], 0x20000))
        s.vL, s.sW = s.v('lane'), s.sreg('wave')
        t = s.v()
        a(I('v_lshrrev_b32', t, 6, s.V0))
        a(I('v_and_b32', s.vL, 63, s.V0))
        a(I('v_readfirstlane_b32', s.sW, t))
        s.sXCD, s.sIDX, s.sQ, s.sCT = s.sreg('xcd'), s.sreg('idx'), s.sreg('q'), s.sreg('ct')
        a(I('s_and_b32', s.sXCD, s.WG, 7))
        a(I('s_lshr_b32', s.sIDX, s.WG, 3))
        a(I('s_and_b32', s.sQ, s.sIDX, 3))
        a(I('s_lshr_b32', s.sCT, s.sIDX, 2))
        s.sCM = s.sreg('cm')
        a(I('s_xor_b32', s.sCM, s.sCT, P.cm_xor))
        s.sSB, s.sMT, s.sNT, s.sROT = s.sreg('sb'), s.sreg('mt'), s.sreg('nt'), s.sreg('rot')
        b0, b1 = s.sreg(), s.sreg()
        a(I('s_and_b32', b0, s.sXCD, 1))
        a(I('s_lshr_b32', b1, s.sXCD, 1))
        a(I('s_lshl_b32', s.sMT, b0, 2))
        a(I('s_add_u32', s.sSB, s.sMT, b1))
        a(I('s_lshl_b32', s.sSB, s.sSB, 2))
        a(I('s_add_u32', s.sSB, s.sSB, s.sQ))
        a(I('s_add_u32', s.sMT, s.sMT, s.sQ))
        a(I('s_mul_i32', s.sNT, b1, 7))
        a(I('s_add_u32', s.sNT, s.sNT, s.sCT))
        if P.skip3:
            r7 = s.sreg()
            a(I('s_lshl_b32', s.sROT, s.sQ, 1))
            a(I('s_add_u32', s.sROT, s.sROT, b0))
            a(I('s_add_u32', s.sROT, s.sROT, s.sCT))
            a(I('s_sub_u32', r7, s.sROT, 7))
            a(I('s_min_u32', s.sROT, s.sROT, r7))
            a(I('s_sub_u32', r7, s.sROT, 7))
            a(I('s_min_u32', s.sROT, s.sROT, r7))
            a(I('s_add_u32', s.sROT, s.sROT, 4))
            a(I('s_cmp_eq_u32', s.sCT, 7))
            a(I('s_cselect_b32', s.sROT, 3, s.sROT))
        else:
            a(I('s_lshl_b32', s.sROT, s.sQ, 1))
            a(I('s_add_u32', s.sROT, s.sROT, b0))
            a(I('s_add_u32', s.sROT, s.sROT, s.sNT))
        if P.rotmask != 7:
            a(I('s_and_b32', s.sROT, s.sROT, P.rotmask))
        s.sLW = s.sreg('lw')
        a(I('s_lshl_b32', s.sLW, s.sW, 13))
        s.vL16 = s.v('l16')
        a(I('v_lshlrev_b32', s.vL16, 4, s.vL))
        if P.spin is not None:
            s.sSP = s.sreg('spin', 2)
            m = I('s_memrealtime', s.sSP)
            o += [m, WAIT(m)]
        s.sCNT = s.sreg('cnt')
        a(I('s_mov_b32', s.sCNT, 0))
        if P.probe:
            dB = R(4, 's', 'probe', pin=96)
            lb = I('s_load_dwordx2', dB[0:2], s.KA, P.probe_arg)
            o += [lb, I('s_mov_b32', dB[2], P.probe_size), I('s_mov_b32', dB[3], 0x20000), WAIT(lb)]
            pa, pd, ps = s.v(), s.v(), s.sreg()
            a(I('s_lshl_b32', ps, s.WG, 12))
            a(I('v_mov_b32', pa, ps))
            for k in range(P.probe):
                a(I('buffer_load_dword', pd, pa, dB, 0, mods='offen'))
                a(I('v_and_b32', pd, 0, pd))
                a(I('v_add3_u32', pa, pa, pd, 64))
                a(I('v_add_u32', pa, 64, pa))
        a(I('s_cmp_eq_u32', s.sCT, 7))
        a(I('s_cbranch_scc1', 'L_helper'))
        s.kloads = lds
        if P.diag:
            s.diag_regs = (m.ops[0], m2.ops[0])
        return o

    def after_kernarg(s):
        o = []
        a = o.append
        s.sE = s.sreg('epoch')
        s.ldE = I('s_load_dword', s.sE, s.dWS[0:2], 0)
        a(s.ldE)
        s.keep = [s.vCT]
        return o

    def tag_setup_regs(s):
        s.sTAG, s.vTAG, s.vM0 = s.sreg('tag'), s.v('vtag'), s.v('vm0')

    def tag_setup(s):
        return [I('s_add_u32', s.sTAG, s.sE, TAGSTEP), I('v_mov_b32', s.vTAG, s.sTAG),
                I('v_min_u32', s.vM0, 1, s.vL), I('v_lshlrev_b32', s.vM0, 30, s.vM0)]

    def lane_floats(s):
        o = []
        a = o.append
        rho, q, t, u = s.v(), s.v(), s.v(), s.v()
        s.fJ1, s.fQ, s.fMU = s.v('fj1'), s.v('fq'), s.v('fmu')
        w16 = s.sreg()
        a(I('v_and_b32', rho, 15, s.vL))
        a(I('v_lshrrev_b32', q, 4, s.vL))
        a(I('s_lshl_b32', w16, s.sW, 4))
        a(I('v_add_u32', t, w16, rho))
        a(I('v_cvt_f32_u32', s.fJ1, t))
        a(I('v_cvt_f32_u32', s.fQ, q))
        a(I('v_and_b32', t, 12, rho))
        a(I('v_add_u32', u, rho, t))
        a(I('v_cvt_f32_u32', s.fMU, u))
        return o

    def sincos(s, step, k, base):
        p, c, sn = s.v(), s.v(), s.v()
        if k == 0:
            return [I('v_cos_f32', c, base), I('v_sin_f32', sn, base)], c, sn
        return [I('v_fmamk_f32', p, step, lit(k), base), I('v_cos_f32', c, p), I('v_sin_f32', sn, p)], c, sn

    def consts_p2(s):
        o = []
        a = o.append
        s.C1A = [s.v(f'c1a{k}', 4, 'a') for k in range(4)]
        s.C1B = [s.v(f'c1b{k}', 4, 'a') for k in range(4)]
        st, ba = s.v(), s.v()
        a(I('v_mul_f32', st, lit(1 / 64), s.fJ1))
        a(I('v_mul_f32', ba, st, s.fQ))
        a(I('v_mul_f32', ba, 4.0, ba))
        pend = []
        for ks in range(4):
            for i in range(4):
                g, c, sn = s.sincos(st, 16 * ks + i, ba)
                ta, tb = s.v(), s.v()
                o += g
                o += pend
                pend = [I('v_cvt_pk_bf16_f32', ta, c, sn), I('v_cvt_pk_bf16_f32', tb, neg(sn), c),
                        I('v_accvgpr_write_b32', s.C1A[ks][i], ta), I('v_accvgpr_write_b32', s.C1B[ks][i], tb)]
        s.C2 = [[s.v(f'c2{t}{k}', 4, 'a') for k in range(2)] for t in range(2)]
        f8q = s.v()
        a(I('v_mul_f32', f8q, lit(8.0), s.fQ))
        mus = []
        for t in range(2):
            mu = s.v()
            if t:
                a(I('v_add_f32', mu, 4.0, s.fMU))
            else:
                mu = s.fMU
            mus.append(mu)
            st, ba = s.v(), s.v()
            a(I('v_mul_f32', st, lit(1 / 32), mu))
            a(I('v_mul_f32', ba, st, f8q))
            for ks in range(2):
                for r in range(4):
                    g, c, sn = s.sincos(st, 4 * ks + r, ba)
                    ta = s.v()
                    o += g
                    o += pend
                    pend = [I('v_cvt_pk_bf16_f32', ta, c, sn), I('v_accvgpr_write_b32', s.C2[t][ks][r], ta)]
        o += pend
        s.T1 = [[None] * 4 for _ in range(2)]
        st, ba = s.v(), s.v()
        a(I('v_mul_f32', st, lit(1 / 2048), s.fJ1))
        a(I('v_mul_f32', ba, st, f8q))
        for tb in range(2):
            for r in range(4):
                g, c, sn = s.sincos(st, 4 * tb + r, ba)
                c.name = sn.name = 'tw'
                o += g
                s.T1[tb][r] = (c, sn)
        s.T3 = [[None] * 4 for _ in range(2)]
        jb, w16 = s.v(), s.sreg()
        a(I('s_lshl_b32', w16, s.sW, 4))
        a(I('v_cvt_f32_u32', jb, w16))
        a(I('v_fmamk_f32', jb, s.fQ, lit(4.0), jb))
        for nt in range(2):
            st, ba = s.v(), s.v()
            a(I('v_mul_f32', st, lit(1 / 2048), mus[nt]))
            a(I('v_mul_f32', ba, st, jb))
            for r in range(4):
                g, c, sn = s.sincos(st, r, ba)
                c.name = sn.name = 'tw'
                o += g
                s.T3[nt][r] = (c, sn)
        return o

    def own_xor(s):
        s.sOWN = s.sreg('own')
        t = s.sreg()
        return [I('s_and_b32', s.sOWN, s.sW, 1), I('s_lshl_b32', s.sOWN, s.sOWN, 5), I('s_lshr_b32', t, s.sW, 1),
                I('s_lshl_b32', t, t, 4), I('s_add_u32', s.sOWN, s.sOWN, t)]

    def consts_finv(s):
        o = []
        a = o.append
        s.FV = [[s.v(f'fv{nq}{j}', 4, 'v') for j in range(8)] for nq in range(2)]
        n0, cb, h2, c64 = s.v(), s.v(), s.v(), s.sreg()
        nb = s.sreg()
        a(I('v_and_b32', n0, 31, s.vL))
        a(I('v_xor_b32', n0, s.sOWN, n0))
        a(I('s_lshl_b32', nb, s.sCM, 6))
        a(I('v_add_u32', n0, nb, n0))
        a(I('v_lshrrev_b32', h2, 5, s.vL))
        a(I('v_lshlrev_b32', h2, 1, h2))
        a(I('s_lshl_b32', c64, s.sW, 5))
        a(I('v_add_u32', h2, c64, h2))
        a(I('v_cvt_f32_u32', cb, h2))
        msk = s.sreg('nyq', 2)
        sp, sel, sgn, z = s.v(), s.v(), s.v(), s.v()
        a(I('v_cmp_eq_u32', msk, 0, h2))
        a(I('v_and_b32', sp, 1, n0))
        a(I('v_mul_u32_u24', sel, 0x0202, sp))
        a(I('v_lshl_or_b32', sel, sel, 16, sel))
        a(I('v_xor_b32', sel, 0x03020100, sel))
        a(I('v_add_u32', z, 1, n0))
        a(I('v_and_b32', z, 2, z))
        a(I('v_lshlrev_b32', sgn, 14, z))
        a(I('v_and_b32', z, 2, n0))
        a(I('v_lshl_or_b32', sgn, z, 30, sgn))
        a(I('v_lshlrev_b32', sp, 15, sp))
        a(I('v_or_b32', sp, 0x3f00, sp))
        pend = []
        for nq in range(2):
            n, st, ba = s.v(), s.v(), s.v()
            if nq:
                a(I('v_xor_b32', n, 32, n0))
            else:
                n = n0
            a(I('v_cvt_f32_u32', st, n))
            a(I('v_mul_f32', st, lit(1 / 512), st))
            a(I('v_mul_f32', ba, st, cb))
            for j in range(4):
                for i in range(4):
                    g, c, sn = s.sincos(st, 8 * j + (0, 1, 4, 5)[i], ba)
                    ta, tb = s.FV[nq][j][i], s.FV[nq][j + 4][i]
                    o += g
                    o += pend
                    pend = [I('v_cvt_pk_bf16_f32', ta, c, sn), I('v_perm_b32', tb, ta, ta, sel), I('v_xor_b32', tb, tb, sgn)]
                    if j == 0 and i == 0:
                        pend.append(I('v_cndmask_b32', ta, ta, sp, msk))
        o += pend
        return o

    def wt_job(s):
        A, C = [], []
        a = A.append
        t, t2, so = s.sreg(), s.sreg(), s.sreg()
        a([I('s_lshl_b32', t, s.sXCD, 3)])
        a([I('s_lshl_b32', t2, s.sCT, 8)])
        a([I('s_add_u32', t, t, t2)])
        a([I('s_lshl_b32', t2, s.sW, 1)])
        a([I('s_add_u32', t, t, t2)])
        a([I('s_mul_i32', t, t, 514)])
        a([I('s_lshl_b32', t2, s.sQ, 7)])
        a([I('s_add_u32', so, t, t2)])
        r0, r1, vo = [s.v() for _ in range(3)]
        a([I('v_lshrrev_b32', r0, 5, s.vL)])
        a([I('v_bfe_u32', r1, s.vL, 3, 2)])
        a([I('v_lshl_add_u32', r0, r1, 6, r0)])
        a([I('v_mul_u32_u24', r0, 514, r0)])
        a([I('v_and_b32', r1, 7, s.vL)])
        a([I('v_lshl_add_u32', vo, r1, 4, r0)])
        w1k = s.sreg()
        a([I('s_lshl_b32', w1k, s.sW, 10)])
        d0 = I('buffer_load_dwordx4', vo, s.dWR, so, mods=f'offen{P.nt_s} lds')
        d1 = I('buffer_load_dwordx4', vo, s.dWI, so, mods=f'offen{P.nt_s} lds')
        A += dma_group(I('s_add_u32', 'm0', w1k, 4 * SLOT), [d0])
        A += dma_group(I('s_add_u32', 'm0', w1k, 4 * SLOT + 4096), [d1])
        c = C.append
        ra, x, y, st = s.v(), s.v(), s.v(), s.sreg()
        c(I('v_lshrrev_b32', x, 2, s.vL))
        c(I('v_and_b32', y, 3, s.vL))
        c(I('v_lshlrev_b32', y, 3, y))
        c(I('v_lshl_add_u32', ra, x, 7, y))
        c(I('s_lshl_b32', st, s.sW, 5))
        c(I('s_add_u32', st, st, 4 * SLOT))
        c(I('v_add_u32', ra, st, ra))
        npre = len(C)
        rd = [[s.v('wq', 2) for _ in range(2)] for _ in range(2)]
        for hi in range(2):
            for m in range(2):
                c(I('ds_read_b64_tr_b16', rd[hi][m], ra, mods=f'offset:{hi * 2048 + m * 4096}'))
        lastrd = C[-1]
        sl, sh = s.sreg(), s.sreg()
        c(I('s_mov_b32', sl, 0x05040100))
        c(I('s_mov_b32', sh, 0x07060302))
        va, so2, fo = s.v(), s.sreg(), s.sreg()
        x, y = s.v(), s.v()
        c(I('s_lshl_b32', so2, s.sQ, 2))
        c(I('s_add_u32', so2, so2, s.sW))
        c(I('v_and_b32', x, 15, s.vL))
        c(I('v_or_b32', y, so2, x))
        c(I('v_min_u32', y, 1, y))
        c(I('v_xor_b32', y, 1, y))
        c(I('v_lshlrev_b32', y, 30, y))
        c(I('v_mul_u32_u24', x, CP, x))
        c(I('v_add_u32', x, x, y))
        c(I('v_lshrrev_b32', y, 4, s.vL))
        c(I('v_lshl_add_u32', va, y, 4, x))
        c(I('s_lshl_b32', fo, so2, 3))
        c(I('s_add_u32', fo, fo, s.sXCD))
        c(I('s_lshl_b32', fo, fo, 3))
        c(I('s_add_u32', fo, fo, s.sCT))
        c(I('s_lshl_b32', fo, fo, 2))
        c(I('s_add_u32', fo, fo, FW))
        c(I('s_mul_i32', so2, so2, 16 * CP))
        for (src, msk_, sh_, dsh) in ((s.sCT, 1, 0, 12), (s.sXCD, 0, 1, 10), (s.sCT, 0, 1, 8), (s.sXCD, 1, 0, 7)):
            z = s.sreg()
            c(I('s_and_b32', z, src, msk_) if msk_ else I('s_lshr_b32', z, src, sh_))
            c(I('s_lshl_b32', z, z, dsh))
            c(I('s_add_u32', so2, so2, z))
        c(I('s_add_u32', so2, so2, WT))
        sts = []
        for hi in range(2):
            o4 = s.v('wo', 4)
            for k in range(4):
                c(I('v_perm_b32', o4[k], rd[hi][1][k >> 1], rd[hi][0][k >> 1], (sl, sh)[k & 1]))
            sts.append(I('buffer_store_dwordx4', o4, va, s.dWS, so2, mods=f'offen offset:{hi * 64} sc1'))
        return A, d1, C[:npre], C[npre:], lastrd, sts, [WAIT(*sts), s.flag_store(fo)]

    def nyquist_job(s):
        L, C = [], []
        hid = s.sSB
        u0, vv, t, so, so2 = [s.sreg() for _ in range(5)]
        x, y, fr, fi = s.v(), s.v(), s.v('ny'), s.v('ny')
        L += [I('s_and_b32', u0, hid, 3), I('s_lshr_b32', vv, hid, 2), I('s_lshl_b32', t, u0, 4), I('s_lshl_b32', so, vv, 8),
              I('s_add_u32', so, so, t), I('s_mul_i32', so, so, 514), I('s_lshl_b32', t, s.sW, 28), I('s_add_u32', so, so, t),
              I('v_lshrrev_b32', x, 2, s.vL), I('v_and_b32', y, 3, s.vL), I('v_lshl_add_u32', x, y, 6, x), I('v_mul_u32_u24', x, 514, x),
              I('buffer_load_ushort', fr, x, s.dWR, so, mods='offen offset:512'),
              I('buffer_load_ushort', fi, x, s.dWI, so, mods='offen offset:512')]
        z = s.sreg()
        x2 = s.v()
        C += [I('s_and_b32', so2, vv, 1), I('s_lshl_b32', so2, so2, 12), I('s_lshl_b32', z, u0, 10), I('s_add_u32', so2, so2, z),
              I('s_lshr_b32', z, vv, 1), I('s_lshl_b32', z, z, 8), I('s_add_u32', so2, so2, z), I('s_add_u32', so2, so2, t),
              I('s_add_u32', so2, so2, WT), I('v_lshlrev_b32', x2, 2, s.vL), I('v_lshl_or_b32', fr, fi, 16, fr),
              I('buffer_store_dword', fr, x2, s.dWS, so2, mods='offen sc1')]
        return L, C

    def tail_setup(s):
        o = []
        a = o.append
        rp, t = s.sreg(), s.sreg()
        a(I('s_and_b32', rp, s.sCT, P.rc_mask))
        a(I('s_mul_i32', rp, rp, 7))
        a(I('s_lshr_b32', rp, rp, 2))
        a(I('s_mul_i32', t, s.sQ, P.rq))
        a(I('s_lshr_b32', t, t, 1))
        a(I('s_add_u32', rp, rp, t))
        a(I('s_mul_i32', t, s.sXCD, P.rx))
        a(I('s_lshr_b32', t, t, 2))
        a(I('s_add_u32', rp, rp, t))
        for _ in range(2):
            a(I('s_sub_u32', t, rp, 14))
            a(I('s_min_u32', rp, rp, t))
        s.sPP = []
        w14 = s.sreg()
        a(I('s_mul_i32', w14, s.sW, 14))
        for jp in range(14):
            p, z = s.sreg(f'pp{jp}'), s.sreg()
            o += [I('s_add_u32', p, rp, jp), I('s_sub_u32', z, p, 14), I('s_min_u32', p, p, z)]
            a(I('s_add_u32', p, p, w14))
            a(I('s_lshl_b32', p, p, 11))
            s.sPP.append(p)
        s.sCT128 = s.sreg('ct128')
        a(I('s_lshl_b32', s.sCT128, s.sCM, 7))
        s.sHB = s.sreg('hb')
        a(I('s_mul_i32', s.sHB, s.sSB, 2 * 112 * 1024))
        a(I('s_add_u32', s.sHB, s.sHB, HH))
        x, y = s.v(), s.v()
        s.vSW = s.v('swz')
        a(I('v_bfe_u32', x, s.vL, 4, 1))
        a(I('v_lshlrev_b32', x, 2, x))
        a(I('v_and_b32', y, 7, s.vL))
        a(I('v_xor_b32', x, x, y))
        a(I('v_lshlrev_b32', s.vSW, 4, x))
        s.vD = [s.v(f'vd{i}') for i in range(4)]
        a(I('v_lshrrev_b32', y, 3, s.vL))
        a(I('v_lshl_add_u32', s.vD[0], y, 10, s.vSW))
        for i in range(1, 4):
            a(I('v_add_u32', s.vD[i], i * 7168, s.vD[0]))
        return o

    def wd_unit(s, jp):
        if jp < 8:
            return (4, 0, 1, 2)[jp >> 1] * SLOT + (jp & 1) * 4096
        if jp == 8:
            return 3 * SLOT
        return s.wd_unit(jp - 9)

    def wd_dma(s, jp):
        so = s.sreg()
        g = [[I('s_lshl_b32', so, s.sPP[jp], 4)], [I('s_add_u32', so, so, s.sCT128)]]
        d = [I('buffer_load_dwordx4', s.vD[i], s.dWD, so, mods=f'offen offset:{i * 1024} lds') for i in range(4)]
        pre = [WAIT(s.wdrd[2 * (jp - 9) + 1])] if jp >= 9 else []
        dg = dma_group(I('s_add_u32', 'm0', s.sLW, s.wd_unit(jp)), d)
        g += [pre + dg[0]] + dg[1:]
        s.wdtok[jp] = d[-1]
        return g

    def wd_init(s):
        ta, r = s.tr_addr(True)
        s.wdwin = {0: r}
        s.WD, s.wdrd = {}, {}
        for w in (1, 2):
            s.wdwin[w] = (s.v('tra'), s.v('tra'))
            ta += [I('v_add_u32', s.wdwin[w][k], w * 65536, r[k]) for k in range(2)]
        return ta

    def wd_read(s, j):
        ad = s.wd_unit(j >> 1) + (j & 1) * 2048
        r, off = s.wdwin[ad >> 16], ad & 0xffff
        out = [[WAIT(s.wdtok[j >> 1])]] if (j & 1) == 0 else []
        for nq in range(2):
            d = s.v('wd', 4, 'any')
            s.WD[(j, nq)] = d
            for e in range(2):
                rd = I('ds_read_b64_tr_b16', d[2 * e:2 * e + 2], r[nq], mods=f'offset:{off + e * 1024}')
                out.append([rd])
                s.wdrd[j] = rd
        return out

    def tr_addr(s, own):
        o = []
        a = o.append
        x, y, z = s.v(), s.v(), s.v()
        r0, r1 = s.v('tra'), s.v('tra')
        a(I('v_lshrrev_b32', x, 5, s.vL))
        a(I('v_bfe_u32', y, s.vL, 2, 2))
        a(I('v_lshl_add_u32', x, x, 2, y))
        a(I('v_lshlrev_b32', x, 7, x))
        a(I('v_bfe_u32', y, s.vL, 4, 1))
        a(I('v_lshlrev_b32', y, 5, y))
        a(I('v_and_b32', z, 3, s.vL))
        a(I('v_lshl_add_u32', y, z, 3, y))
        a(I('v_bfe_u32', z, s.vL, 3, 1))
        a(I('v_lshlrev_b32', z, 6, z))
        a(I('v_xor_b32', y, y, z))
        if own:
            t = s.sreg()
            a(I('s_lshl_b32', t, s.sOWN, 1))
            a(I('v_xor_b32', y, t, y))
        a(I('v_add3_u32', r0, x, y, s.sLW))
        a(I('v_xor_b32', r1, 64, r0))
        return o, (r0, r1)

    def h_load(s, sq, j, cls='any'):
        key = (sq, j >> 1)
        g = []
        if key not in s.hso:
            so = s.sreg()
            s.hso[key] = so
            g.append(I('s_add_u32', so, s.sPP[j >> 1], s.sHB if sq == 0 else s.sHB2))
        d = s.v(f'h{sq}_', 4, cls)
        g.append(I('buffer_load_dwordx4', d, s.vL16, s.dWS, s.hso[key], mods=f'offen offset:{(j & 1) * 1024} sc1'))
        s.hfrag[(sq, j)] = d
        return g

    def yw_poll(s):
        A, B = [], []
        x, y, sy, sw = s.v(), s.v('l4'), s.sreg(), s.sreg()
        s.vL4 = y
        A.append(I('v_lshlrev_b32', y, 2, s.vL))
        A.append(I('v_and_b32', x, 127, y))
        A.append(I('s_lshr_b32', sy, s.WG, 6))
        A.append(I('s_lshl_b32', sy, sy, 7))
        A.append(I('s_add_u32', sy, sy, FY))
        A.append(I('s_lshr_b32', sw, s.WG, 4))
        A.append(I('s_lshl_b32', sw, sw, 8))
        A.append(I('s_add_u32', sw, sw, FW))
        dy, ly = s.poll_issue(x, sy)
        dw, lw = s.poll_issue(y, sw)
        A.append(ly)
        A2 = [lw]
        sc = s.sreg('col')
        s.sCOL = sc
        B.append(I('s_mul_i32', sc, s.WG, CP))
        so = s.sreg()
        B.append(I('s_lshl_b32', so, s.sW, 11))
        B.append(I('s_add_u32', so, so, sc))
        B.append(I('s_add_u32', so, so, YT))
        B.append(s.poll_check(dy, ly, 56) + s.fine(42))
        d = [I('buffer_load_dwordx4', s.vL16, s.dWS, so, mods=f'offen offset:{k * 1024} sc1 lds') for k in range(2)]
        B.append(sum(dma_group(I('s_add_u32', 'm0', s.sLW, s.wd_unit(7)), d), []))
        s.ytok = d[1]
        B2 = B
        B = [s.poll_check(dw, lw, 57) + s.fine(43)]
        s.WF = []
        w1k = s.sreg()
        B.append(I('s_lshl_b32', w1k, s.sW, 10))
        B.append(I('s_add_u32', w1k, w1k, sc))
        for m in range(2):
            d, so3 = s.v('wf', 4), s.sreg()
            B.append(I('s_add_u32', so3, w1k, WT + m * 4096))
            B.append(I('buffer_load_dwordx4', d, s.vL16, s.dWS, so3, mods='offen sc1'))
            s.WF.append(d)
        return A, B2, A2, B

    def hflag_poll(s, base):
        A = []
        if not hasattr(s, 'vF28') or s.vF28 is None:
            s.vF28 = s.v('f28')
            A.append(I('v_min_u32', s.vF28, 27, s.vL))
            A.append(I('v_lshlrev_b32', s.vF28, 2, s.vF28))
        so = s.sreg()
        A.append(I('s_and_b32', so, s.sSB, 28))
        A.append(I('s_add_u32', so, so, s.sW))
        A.append(I('s_lshl_b32', so, so, 7))
        A.append(I('s_add_u32', so, so, base))
        d, ld = s.poll_issue(s.vF28, so)
        A.append(ld)
        return A, [s.poll_check(d, ld, 58 if base == FE else 59) + s.fine(45 if base == FE else 46)]

    def glu_epi(s, acc, G, so):
        o = []
        h = s.v('hout', 4)
        for p in range(0, 8, 2):
            for k in (p, p + 1):
                o.append(I('v_mul_f32', acc[k], G[1], acc[k]))
            for k in (p, p + 1):
                o.append(I('v_exp_f32', acc[k], acc[k]))
            for k in (p, p + 1):
                o.append(I('v_fma_f32', acc[k], acc[k], G[2], G[2]))
            for k in (p, p + 1):
                o.append(I('v_rcp_f32', acc[k], acc[k]))
            for k in (p, p + 1):
                o.append(I('v_mul_f32', acc[8 + k], acc[k], acc[8 + k]))
            o.append(I('v_cvt_pk_bf16_f32', h[p >> 1], acc[8 + p], acc[9 + p]))
        st = I('buffer_store_dwordx4', h, s.vL16, s.dWS, so, mods='offen sc1')
        o.append(st)
        return o, st

    def gemm_path(s):
        o = []
        a = o.append
        s.wdtok, s.hso, s.hfrag, s.vF28 = {}, {}, {}, None
        mt, nt, rot, t = s.sMT, s.sNT, s.sROT, s.sreg()
        sXM, sXT, sWB = s.sreg('xm'), s.sreg('xt'), s.sreg('wb')
        a(I('s_lshl_b32', sXM, mt, 18))
        a(I('s_lshl_b32', sXT, s.sW, 16))
        a(I('s_add_u32', sXT, sXT, sXM))
        a(I('s_mul_i32', sWB, s.sW, 16 * 3584))
        a(I('s_lshl_b32', t, nt, 7))
        a(I('s_add_u32', sWB, sWB, t))
        vX = [s.v(f'vx{i}') for i in range(4)]
        vG = [s.v(f'vg{i}') for i in range(2)]
        vU = [s.v(f'vu{i}') for i in range(2)]
        r8, p, x, y = s.v(), s.v(), s.v(), s.v()
        a(I('v_lshrrev_b32', r8, 3, s.vL))
        a(I('v_and_b32', p, 7, s.vL))
        a(I('v_lshrrev_b32', x, 4, s.vL))
        a(I('v_xor_b32', x, x, p))
        a(I('v_lshlrev_b32', x, 4, x))
        a(I('v_lshl_add_u32', vX[0], r8, 10, x))
        a(I('v_xor_b32', y, 64, vX[0]))
        a(I('v_add_u32', vX[1], 7168, y))
        a(I('v_add_u32', vX[2], 2 * 7168, vX[0]))
        a(I('v_add_u32', vX[3], 3 * 7168, y))
        a(I('v_bfe_u32', x, s.vL, 4, 1))
        a(I('v_lshlrev_b32', x, 1, x))
        a(I('v_xor_b32', x, x, p))
        a(I('v_lshlrev_b32', x, 4, x))
        a(I('v_mul_u32_u24', y, 3584, r8))
        a(I('v_add_u32', vG[0], x, y))
        a(I('v_add_u32', vG[1], 8 * 3584 - 1024, vG[0]))
        a(I('v_xor_b32', vU[0], 64, vG[0]))
        a(I('v_xor_b32', vU[1], 64, vG[1]))
        stok = {}

        def stage_dma(tt):
            sl = (tt % 4) * SLOT
            g = []
            if tt < 8:
                sk, sx, sw_ = s.sreg(), s.sreg(), s.sreg()
                g += [[I('s_add_u32', sk, rot, tt)], [I('s_and_b32', sk, sk, 7)], [I('s_lshl_b32', sx, sk, 7)],
                      [I('s_add_u32', sx, sx, sXT)], [I('s_mul_i32', sw_, sk, 64 * 3584)], [I('s_add_u32', sw_, sw_, sWB)]]
                d = [I('buffer_load_dwordx4', vG[i], s.dWG, sw_, mods=f'offen offset:{i * 1024}{P.nt_w} lds') for i in range(2)]
                g += dma_group(I('s_add_u32', 'm0', s.sLW, sl + 4096), d)
                d = [I('buffer_load_dwordx4', vU[i], s.dWU, sw_, mods=f'offen offset:{i * 1024}{P.nt_w} lds') for i in range(2)]
                g += dma_group(I('s_add_u32', 'm0', s.sLW, sl + 6144), d)
                d = [I('buffer_load_dwordx4', vX[i], s.dX, sx, mods=f'offen offset:{i * 1024}{P.nt_x} lds') for i in range(4)]
                g += dma_group(I('s_add_u32', 'm0', s.sLW, sl), d)
            else:
                for e in range(2):
                    sx = s.sreg()
                    g.append([I('s_add_u32', sx, sKW[e], sUP[tt - 8])])
                    d = [I('buffer_load_dwordx4', vX[i], s.dX, sx, mods=f'offen offset:{i * 1024}{P.nt_x} lds') for i in range(4)]
                    g += dma_group(I('s_add_u32', 'm0', s.sLW, sl + e * 4096), d)
            stok[tt] = d[-1]
            return g
        flat = lambda gs: [i for g in gs for i in (g if isinstance(g, list) else [g])]
        a(WAIT(*s.kloads))
        o += s.fine(5)
        o += flat(stage_dma(0))
        o += s.fine(6)
        tg = s.tag_setup_regs()
        wA, wdma, wC0, wC, wrd, wst, wF = s.wt_job()
        if P.wt_bar == 0:
            o += flat(wA)
        g1 = stage_dma(1)
        o += flat(g1[:min(8, P.n1)])
        o += s.fine(7)
        o += flat(g1[8:P.n1])
        o += s.fine(12)
        o += s.after_kernarg()
        o += s.fine(13)
        if P.diag:
            o += [I('v_writelane_b32', s.vST, s.diag_regs[0][0], 62), I('v_writelane_b32', s.vST, s.diag_regs[1][0], 0)]
        vB = [[s.v(f'vb{w}{k}') for k in range(4)] for w in range(2)]
        vA = [s.v('va0'), s.v('va1')]
        row, hh, f, z = s.v(), s.v(), s.v(), s.v()
        a(I('v_and_b32', row, 31, s.vL))
        a(I('v_lshrrev_b32', hh, 5, s.vL))
        a(I('v_bfe_u32', f, s.vL, 1, 3))
        a(I('v_xor_b32', f, f, hh))
        a(I('v_lshlrev_b32', f, 4, f))
        a(I('v_lshl_add_u32', vB[0][0], row, 7, f))
        for k in range(1, 4):
            a(I('v_xor_b32', vB[0][k], 32 * k, vB[0][0]))
        for k in range(4):
            a(I('v_add_u32', vB[1][k], 65536, vB[0][k]))
        vROW16 = s.v('row16')
        a(I('v_lshlrev_b32', vROW16, 4, row))
        up, rr = s.v(), s.v()
        a(I('v_bfe_u32', up, s.vL, 4, 1))
        a(I('v_bfe_u32', rr, s.vL, 2, 2))
        a(I('v_lshl_add_u32', rr, hh, 3, rr))
        a(I('v_lshlrev_b32', rr, 7, rr))
        a(I('v_lshl_add_u32', rr, up, 11, rr))
        a(I('v_bfe_u32', z, s.vL, 3, 2))
        a(I('v_xor_b32', z, s.sW, z))
        a(I('v_lshl_add_u32', rr, z, 5, rr))
        a(I('v_and_b32', z, 3, s.vL))
        a(I('v_lshl_add_u32', rr, z, 3, rr))
        a(I('v_add_u32', vA[0], 4096, rr))
        a(I('v_add_u32', vA[1], 4096 + 65536, rr))
        SEL = s.v('sel', 4)
        a(I('v_xor_b32', z, up, s.vL))
        a(I('v_and_b32', z, 1, z))
        a(I('v_add_u32', z, -1, z))
        for k in range(4):
            a(I('v_and_b32', SEL[k], 0x3f803f80, z))
        sKW = [s.sreg('kw0'), s.sreg('kw1')]
        qc = Queue('const')
        for e in range(2):
            qc.addeach([I('s_lshl_b32', sKW[e], s.sW, 1), I('s_add_u32', sKW[e], sKW[e], rot), I('s_add_u32', sKW[e], sKW[e], e),
                        I('s_and_b32', sKW[e], sKW[e], 7), I('s_lshl_b32', sKW[e], sKW[e], 7), I('s_add_u32', sKW[e], sKW[e], sXM),
                        I('s_add_u32', sKW[e], sKW[e], 32768)])
        sUP = [s.sreg(f'up{u}') for u in range(4)]
        for u in range(4):
            qc.addeach([I('s_and_b32', sUP[u], s.sCT, P.ru_mask), I('s_add_u32', sUP[u], sUP[u], u), I('s_and_b32', sUP[u], sUP[u], 3), I('s_lshl_b32', sUP[u], sUP[u], 16)])
        qc.addeach(s.own_xor() + s.lane_floats() + s.consts_p2())
        for g in s.tail_setup():
            qc.add(g)
        n = 0
        rest = list(g1[P.n1:])
        while n < P.npre and qc.items:
            it = qc.items.pop(0)
            o += it.insts
            n += it.cost
            if len(rest) > 4 and n >= P.n1_at:
                o += flat(rest[:-4])
                rest = rest[-4:]
        o += s.fine(14)
        o += flat(rest)
        o += flat(s.stamp(1))

        def xaddr(slot, off):
            ad = slot * SLOT + off
            return ad >> 16, ad & 0xffff
        acc = [s.v(f'acc{i}', 16) for i in range(8)]
        AF = [s.v(f'af{k}', 4, 'a') for k in range(32)]
        CS = s.v('cs', 4)

        def reads1(k):
            tt, ks = k >> 2, k & 3
            g = []
            w, off = xaddr(tt % 4, ks * 8192)
            g.append(I('ds_read_b64_tr_b16', AF[k][0:2], vA[w], mods=f'offset:{off}'))
            g.append(I('ds_read_b64_tr_b16', AF[k][2:4], vA[w], mods=f'offset:{off + 512}'))
            bs = []
            for i in range(4):
                b = s.v('bf', 4)
                w, off = xaddr(tt % 4, i * 8192)
                g.insert(1 + (i > 0) + i, I('ds_read_b128', b, vB[w][ks], mods=f'offset:{off}'))
                bs.append(b)
            return g, bs
        a(WAIT(stok[0], s.ldE))
        a(I('s_barrier'))
        g, bs = reads1(0)
        o += g
        o += flat(s.stamp(2))
        qr, qd, qm = Queue('rd'), Queue('dma'), Queue('misc')
        beats = []
        s.pace(qd, stage_dma(2), 0, 14)
        qm.addeach(s.tag_setup(), 0, 20)
        for k in range(32):
            b0 = 5 * k
            for i in range(4):
                beats.append(([WAIT(*g)] if i == 0 else []) + [I('v_mfma_f32_32x32x16_bf16', acc[i], AF[k], bs[i], acc[i] if k else 0)])
            beats.append([I('v_mfma_f32_16x16x32_bf16', CS, SEL, AF[k], CS if k else 0)])
            if k < 31:
                if (k & 3) == 3:
                    tt = (k >> 2) + 1
                    qr.add(s.fine(16 + 2 * tt) + [WAIT(stok[tt]), I('s_barrier')] + ([I('comment', 'code prefetch landed', extra_use=s.keep)] if tt == 1 else []) + s.fine(17 + 2 * tt), b0, b0)
                    gs = stage_dma(tt + 2)
                    if tt == P.wt_bar:
                        gs = wA + gs
                    if tt == P.wdt_bar:
                        tv, ts, s.vWT = s.v(), s.sreg(), s.v('touch')
                        gs = [[I('v_and_b32', tv, 15, s.vL)], [I('v_lshlrev_b32', tv, 7, tv)], [I('s_lshl_b32', ts, nt, 3)], [I('s_add_u32', ts, ts, mt)],
                              [I('s_lshl_b32', ts, ts, 2)], [I('s_add_u32', ts, ts, s.sW)], [I('s_lshl_b32', ts, ts, 11)],
                              [I('buffer_load_dword', s.vWT, tv, s.dWD, ts, mods='offen')]] + gs
                    s.pace(qd, gs, b0, 19)
                g, bs = reads1(k + 1)
                for n, x_ in enumerate(g):
                    qr.add(x_, b0, b0 + (1 if n < 4 else 2))
        G, Gld = [None] * 8, [None] * 8

        def stat_load(ti):
            so = s.sreg()
            d, ld = s.poll_issue(vROW16, so, 4, 'stat')
            G[ti], Gld[ti] = d, ld
            if ti < 4:
                return [I('s_add_u32', so, sST, ti * 1024), ld]
            return [I('s_lshr_b32', so, sUP[ti - 4], 6), I('s_add_u32', so, so, sST), I('s_add_u32', so, so, 512), ld]
        if P.wt_early:
            b_ = 5 * (4 * (P.wt_bar + 2) - 1) + 1
            qm.addeach(wC0, b_ - 12, b_)
            qm.addeach(wC + wst, b_, b_ + 24)
            qm.add(wF + s.fine(44), b_ + 24 + P.wflag, b_ + 24 + P.wflag)
        else:
            qm.addeach(wC0 + wC[4:-8], 60, 150)
        sST = s.sreg('st')
        qm.addeach([I('s_lshl_b32', sST, mt, 12), I('s_add_u32', sST, sST, STATS)], P.stat_load - 4, P.stat_load)
        for ti in range(P.nstat1):
            qm.addeach(stat_load(ti), P.stat_load, P.stat_load + 8)
        BF = {}

        def read2(u, k):
            b = s.v('bf', 4)
            w, off = xaddr((8 + u) % 4, (k >> 2) * 4096)
            BF[(u, k)] = b
            return I('ds_read_b128', b, vB[w][k & 3], mods=f'offset:{off}')
        qm.sort()
        qr.add(s.fine(32) + [WAIT(stok[8]), I('s_barrier')] + ([I('comment', 'landed', extra_use=[s.vWT])] if P.wdt_bar else []) + s.fine(33), 155, 155)
        RD = {}
        for k in range(7):
            RD[(0, k)] = read2(0, k)
            qr.add(RD[(0, k)], 155 + k // 2, 156 + k // 2)
        o += s.abl(1, weave(beats, [qr, qd, qm, qc], cap=P.cap))
        assert not qr.items and not qd.items and not qm.items, (len(qr.items), len(qd.items), len(qm.items))
        print('const slots left after first pass:', sum(i.cost for i in qc.items), file=sys.stderr)
        o += drain([qc])
        o += flat(s.stamp(3))
        qr, qd, qe, qm = Queue('rd'), Queue('dma'), Queue('epi'), Queue('misc')
        beats = []
        CA = s.v('csa', 4)
        MB = [s.v('mb', 4), s.v('mb', 4)]
        pre = []
        for k in range(1, 4):
            pre += [I('v_mov_b32', CA[k], 0), I('v_mov_b32', MB[0][k], 0), I('v_mov_b32', MB[1][k], 0)]
        mU, mH = s.sreg('mu', 2), s.sreg('mh', 2)
        c0, c1, c2 = s.v(), s.v(), s.v()
        pre += [I('s_mov_b32', mU[0], 0xffff0000), I('s_mov_b32', mU[1], 0xffff0000), I('s_mov_b32', mH[0], 0), I('s_mov_b32', mH[1], -1)]
        qe.addeach(pre, 0, 3)
        qe.addeach([I('v_cndmask_b32', c0, CS[0], CS[1], mU), I('v_cvt_pk_bf16_f32', c1, c0, c0), I('v_and_b32', c2, 0xffff0000, c1),
                    I('v_sub_f32', c0, c0, c2), I('v_cvt_pk_bf16_f32', c0, c0, c0), I('v_cndmask_b32', CA[0], c1, c0, mH)], 1, 4)
        sHS = s.sreg('hs')
        t = s.sreg()
        qm.addeach([I('s_mul_i32', sHS, mt, 8 * 112), I('s_lshl_b32', t, nt, 2), I('s_add_u32', sHS, sHS, t),
                    I('s_add_u32', sHS, sHS, s.sW), I('s_lshl_b32', sHS, sHS, 10), I('s_add_u32', sHS, sHS, HH)], 0, 8)
        sFE = s.sreg('fe')
        t2 = s.sreg()
        qm.addeach([I('s_lshl_b32', sFE, mt, 2), I('s_lshr_b32', t2, s.sXCD, 1), I('s_add_u32', sFE, sFE, t2), I('s_lshl_b32', sFE, sFE, 3),
                    I('s_add_u32', sFE, sFE, s.sCT), I('s_lshl_b32', sFE, sFE, 2), I('s_add_u32', sFE, sFE, s.sW),
                    I('s_lshl_b32', sFE, sFE, 2), I('s_add_u32', sFE, sFE, FE)], 8, 40)
        s.sFE = sFE
        ncorr = [0]
        hst, hsg = {}, {}

        def corr(ti, at):
            mb = MB[ncorr[0] & 1]
            ncorr[0] += 1
            qe.add(s.poll_check(G[ti], Gld[ti], 48 + ti), max(0, at - 3), at - 2)
            qe.add(I('v_mov_b32', mb[0], G[ti][0]), max(0, at - 3), at - 2)
            return [I('v_mfma_f32_32x32x16_bf16', acc[ti], CA, mb, acc[ti])]

        def epi(ti, t0, t1, q):
            so = s.sreg()
            e, st = s.glu_epi(acc[ti], G[ti], so)
            q.addeach(e[:-1], t0, t1)
            if ti < 4:
                hsg[ti] = [I('s_add_u32', so, sHS, 2 * ti * 112 * 1024), st]
            else:
                hsg[ti] = [I('s_lshr_b32', so, sUP[ti - 4], 5), I('s_mul_i32', so, so, 112), I('s_add_u32', so, so, sHS),
                           I('s_add_u32', so, so, 112 * 1024), st]
            hst[ti] = st
        qe2, qg2 = Queue('epi2'), Queue('refill')
        for ti in range(P.nstat1, 8):
            qm.addeach(stat_load(ti), P.stat2, P.stat2 + 6)
        start = {}
        for u in range(4):
            start[u] = len(beats)
            for k in range(32):
                bi = len(beats)
                beats.append(([WAIT(RD[(u, k + 3)])] if (k & 3) == 0 else []) +
                             [I('v_mfma_f32_32x32x16_bf16', acc[4 + u], AF[k], BF[(u, k)], acc[4 + u] if k else 0)])
                if k + 7 < 32:
                    RD[(u, k + 7)] = read2(u, k + 7)
                    qr.add(RD[(u, k + 7)], bi, bi)
                elif u < 3 and k >= 28:
                    if k == 28:
                        qr.add(s.fine(34 + 2 * u) + [WAIT(stok[9 + u], *([wrd] if u == 0 else [])), I('s_barrier')] + s.fine(35 + 2 * u), bi, bi)
                    for kk in range(2 * (k - 28), min(7, 2 * (k - 28) + 2)):
                        RD[(u + 1, kk)] = read2(u + 1, kk)
                        qr.add(RD[(u + 1, kk)], bi, bi)
                if u == 0 and k in (6, 8, 10, 12):
                    ti = (k - 6) // 2
                    beats.append(corr(ti, len(beats)))
                    epi(ti, len(beats) + 2, P.epi_dead[ti], qe2)
            beats.append(corr(4 + u, len(beats)))
            if u < 3:
                epi(4 + u, len(beats) + 2, P.epi_dead[4 + u], qe2)
            if u == 0:
                pass
            gs = []
            if u < 2:
                gs += stage_dma(10 + u)
            for jp in P.wd_plan[u]:
                gs += s.wd_dma(jp)
            t0 = start[u] - (4 if u else 0)
            if gs:
                s.pace(qd, gs, t0, P.wd_span[u])
        for ti in range(4):
            tq = P.epi_dead[3 if P.bunch else ti]
            qm.addeach(hsg[ti], tq + 1, tq + 3)
        qm.add(s.fine(40), P.epi_dead[3] + 3, P.epi_dead[3] + 3)
        qm.add([WAIT(*[hst[k] for k in range(4)]), s.flag_store(sFE)] + s.fine(41), P.eflag, P.eflag)
        for ti in range(4, 4 + P.nmid):
            tq = max(P.eflag, P.epi_dead[ti]) if P.bunch else P.epi_dead[ti]
            qm.addeach(hsg[ti], tq + 1, tq + 3)
        qg = Queue('wdpre')
        qg.addeach(s.wd_init(), P.pre_at - 12, P.pre_at)
        for j in range(2 * P.wd_pre):
            tq = P.pre_at + (j * P.pre_span) // (2 * P.wd_pre)
            for g in s.wd_read(j):
                qg.add(g, tq, tq + 2)
            if (j & 1) and (j >> 1) < P.wd_refill:
                for n, g in enumerate(s.wd_dma(9 + (j >> 1))):
                    qg2.add(g, P.refill_at + (j >> 1) * 10 + max(0, n - 2) * 2, P.refill_at + (j >> 1) * 10 + max(0, n - 2) * 2 + 2)
        qw = Queue('wt')
        if not P.wt_early:
            qw.addeach(wC[:4], 0, 1)
            qw.addeach(wC[-8:] + wst, 4, P.wst_at)
            qm.add(wF + s.fine(44), P.wflag, P.wflag)
        qm.sort()
        qp = Queue('poll')
        pa, pb, pa2, pb2 = s.yw_poll()
        ea, eb = s.hflag_poll(FE)
        for tt, gs, sp in sorted([(P.poll_y, pa, 6), (P.poll_e, ea, 6), (P.poll_w, pa2, 1), (P.chk_y + 12, pb, 12), (P.chk_w + 4, pb2, 4)], key=lambda e: e[0] - e[2]):
            for g in gs:
                qp.add(g, tt - sp, tt)
        o += s.abl(2, weave(beats, [qr, qe, qd, qw, qm, qe2, qg, qg2, qp], cap=P.cap))
        o += drain([qr, qe, qd, qw, qm, qe2, qg, qg2, qp])
        o += flat(s.stamp(4))
        q3 = Queue()
        epi(7, 0, 0, q3)
        extra = [(it.insts, 0, 5000) for it in q3.items]
        for ti in range(4 + P.nmid, 8):
            extra += [([x], 0, 5000) for x in hsg[ti]]
        sFL = s.sreg()
        late = [I('s_add_u32', sFL, sFE, FL - FE), WAIT(*[hst[k] for k in range(4, 8)]), s.flag_store(sFL)]
        o += s.tail(extra, eb, late)
        return o

    def helper_path(s):
        o = []
        a = o.append
        s.wdtok, s.hso, s.hfrag, s.vF28 = {}, {}, {}, None
        flat = lambda gs: [i for g in gs for i in (g if isinstance(g, list) else [g])]
        a(I('label', 'L_helper'))
        t4, bh, rb, t = s.sreg('t4'), s.sreg('bh'), s.sreg('rb'), s.sreg()
        hid = s.sSB
        a(I('s_lshr_b32', t4, hid, 1))
        a(I('s_and_b32', bh, hid, 1))
        a(I('s_lshl_b32', rb, t4, 7))
        a(I('s_lshl_b32', t, bh, 4))
        a(I('s_add_u32', rb, rb, t))
        a(I('s_lshr_b32', t, s.sW, 1))
        a(I('s_lshl_b32', t, t, 3))
        a(I('s_add_u32', rb, rb, t))
        a(I('s_and_b32', t, s.sW, 1))
        a(I('s_lshl_b32', t, t, 1))
        a(I('s_add_u32', rb, rb, t))
        rbb, lx = s.sreg(), s.sreg('lx')
        a(I('s_lshl_b32', rbb, rb, 10))
        a(I('s_lshl_b32', lx, s.sW, 14))
        a(WAIT(*s.kloads))
        xd = []
        groups = [[], []]
        for par in (1, 0):
            for bb in range(4):
                for i in (par, par + 2):
                    rho = 4 * bb + i
                    vo, so = s.v(), s.sreg()
                    g = [I('v_xor_b32', vo, rho * 16, s.vL16), I('s_add_u32', so, rbb, (4 * (bb >> 1) + (bb & 1) + 32 * i) * 1024 - i * 1024)]
                    if i < 2:
                        m0i = I('s_add_u32', 'm0', lx, bb * 4096)
                        g.append(m0i)
                    d = I('buffer_load_dwordx4', vo, s.dX, so, mods=f'offen offset:{i * 1024} lds')
                    d.m0 = m0i
                    g.append(d)
                    xd.append(d)
                    groups[par] += g
        o += groups[1]
        tv, ts, td = s.v(), s.sreg(), s.v('touch')
        a(I('v_and_b32', tv, 31, s.vL))
        a(I('v_lshlrev_b32', tv, 10, tv))
        a(I('s_and_b32', ts, s.sROT, 7))
        a(I('s_lshl_b32', ts, ts, 7))
        a(I('s_lshl_b32', t, s.sMT, 18))
        a(I('s_add_u32', ts, ts, t))
        a(I('s_lshl_b32', t, s.sW, 16))
        a(I('s_add_u32', ts, ts, t))
        a(I('buffer_load_dword', td, tv, s.dX, ts, mods='offen'))
        o += s.after_kernarg()
        if P.diag:
            o += [I('v_writelane_b32', s.vST, s.diag_regs[0][0], 62), I('v_writelane_b32', s.vST, s.diag_regs[1][0], 0)]
        k1, q, fk, fq4 = s.v(), s.v(), s.v(), s.v()
        a(I('v_and_b32', k1, 15, s.vL))
        a(I('v_lshrrev_b32', q, 4, s.vL))
        a(I('v_cvt_f32_u32', fk, k1))
        a(I('v_cvt_f32_u32', fq4, q))
        a(I('v_mul_f32', fq4, 4.0, fq4))
        m0_, m8 = s.sreg('m0', 2), s.sreg('m8', 2)
        a(I('v_cmp_eq_u32', m0_, 0, k1))
        a(I('v_cmp_lt_u32', m8, 7, k1))
        BC, BS = s.v('bc', 4), s.v('bs', 4)
        st, ba, st2, ba2, z = s.v(), s.v(), s.v(), s.v(), s.v()
        a(I('v_mul_f32', st, lit(1 / 32), fk))
        a(I('v_mul_f32', ba, st, fq4))
        a(I('v_mov_b32', z, 0.5))
        a(I('v_cndmask_b32', st2, st, z, m0_))
        a(I('v_mov_b32', z, lit(0.25)))
        a(I('v_cndmask_b32', z, z, 0, m0_))
        a(I('v_fma_f32', ba2, st2, fq4, z))
        for (stp, bas, dst) in ((st, ba, BC), (st2, ba2, BS)):
            for j in range(4):
                cs = []
                for e in range(2):
                    k = (0, 2, 16, 18)[j] + e
                    p, c = s.v(), s.v()
                    if k:
                        a(I('v_fmamk_f32', p, stp, lit(k), bas))
                    else:
                        p = bas
                    a(I('v_cos_f32', c, p))
                    cs.append(c)
                a(I('v_cvt_pk_bf16_f32', dst[j], cs[0], cs[1]))
        TC, TS = s.v('tc', 4), s.v('ts', 4)
        st, ba = s.v(), s.v()
        a(I('v_mul_f32', st, lit(1 / 512), fk))
        a(I('v_mul_f32', ba, st, fq4))
        for r in range(4):
            p = s.v()
            if r:
                a(I('v_fmamk_f32', p, st, lit(r), ba))
            else:
                p = ba
            a(I('v_cos_f32', TC[r], p))
            a(I('v_sin_f32', TS[r], p))
        ARE, AIM, SRE, SIM = s.v('are', 4), s.v('aim', 4), s.v('sre', 4), s.v('sim', 4)
        st, ba, sg = s.v(), s.v(), s.v()
        a(I('v_mul_f32', st, lit(1 / 16), fk))
        a(I('v_mul_f32', ba, st, fq4))
        a(I('v_mov_b32', z, -1.0))
        a(I('v_cndmask_b32', sg, 1.0, z, m8))
        for r in range(4):
            g, c, sn = s.sincos(st, r, ba)
            o += g
            c2, s2 = s.v(), s.v()
            a(I('v_cvt_pk_bf16_f32', ARE[r], c, sn))
            a(I('v_mul_f32', c2, sg, c))
            a(I('v_mul_f32', s2, sg, sn))
            a(I('v_cvt_pk_bf16_f32', AIM[r], neg(s2), c2))
        st, ba, sh, kk = s.v(), s.v(), s.v(), s.v()
        a(I('v_lshlrev_b32', kk, 5, k1))
        a(I('v_add_u32', z, -240, kk))
        a(I('v_cndmask_b32', kk, kk, z, m8))
        vCSP = s.v('csp')
        a(I('v_mov_b32', sh, 256))
        a(I('v_cndmask_b32', kk, kk, sh, m0_))
        a(I('v_cvt_f32_u32', st, kk))
        a(I('v_mul_f32', st, lit(1 / 512), st))
        a(I('v_mul_f32', ba, st, fq4))
        a(I('v_cndmask_b32', sh, 0, 16, m8))
        for r in range(4):
            g, c, sn = s.sincos(st, r, ba)
            o += g
            a(I('v_cvt_pk_bf16_f32', c, c, 0))
            a(I('v_cvt_pk_bf16_f32', sn, neg(sn), 0))
            a(I('v_lshlrev_b32', SRE[r], sh, c))
            a(I('v_lshlrev_b32', SIM[r], sh, sn))
        ONE = s.v('one', 4)
        for k in range(4):
            a(I('v_mov_b32', ONE[k], 0x3f803f80))
        o += groups[0]
        vS = [s.v(f'vs{k}') for k in range(4)]
        x, y = s.v(), s.v()
        a(I('v_xor_b32', x, q, k1))
        a(I('v_lshlrev_b32', x, 4, x))
        a(I('v_lshl_add_u32', x, k1, 10, x))
        a(I('v_add_u32', vS[0], lx, x))
        for k in range(1, 4):
            a(I('v_xor_b32', vS[k], 64 * k, vS[0]))
        vT = s.v('vt')
        a(I('v_lshlrev_b32', vT, 3, s.vL))
        a(I('v_add_u32', vT, lx, vT))
        s.tag_setup_regs()
        tg = s.tag_setup()
        wA, wdma, wC0, wC, wrd, wst, wF = s.wt_job()
        nL, nC = s.nyquist_job()
        tw, tso = s.v(), s.sreg()
        a(I('v_lshlrev_b32', tw, 7, s.vL))
        a(I('s_lshl_b32', tso, hid, 2))
        a(I('s_add_u32', tso, tso, s.sW))
        a(I('s_mul_i32', tso, tso, 14336))
        pre_vm = []
        wl = flat(wA) + nL
        o += [x_ for x_ in wl if x_.kind not in ('dma', 'vld') and 'm0' not in x_.defs]
        vm_first = [x_ for x_ in wl if x_.kind in ('dma', 'vld') or 'm0' in x_.defs]
        tsf = s.sreg()
        a(I('s_lshl_b32', tsf, hid, 2))
        a(I('s_add_u32', tsf, tsf, s.sW))
        a(I('s_mul_i32', tsf, tsf, 8224))
        tw2, tso2 = s.v(), s.sreg()
        a(I('v_lshlrev_b32', tw2, 10, s.vL))
        a(I('s_lshl_b32', tso2, s.sQ, 2))
        a(I('s_add_u32', tso2, tso2, s.sW))
        a(I('s_mul_i32', tso2, tso2, 112 * 1024))
        a(I('s_lshl_b32', t, s.sCM, 7))
        a(I('s_add_u32', tso2, tso2, t))
        for (vv_, sb_, st_) in ((tw2, tso2, 48 * 1024), (tw, tso, 6144)):
            for k in range(2):
                s.keep.append(s.v('touch'))
                ts2 = s.sreg()
                pre_vm.append([I('s_add_u32', ts2, sb_, st_ * k), I('buffer_load_dword', s.keep[-1], vv_, s.dWD, ts2, mods='offen')])
        for d in (s.dWR, s.dWI):
            s.keep.append(s.v('touch'))
            pre_vm.append([I('buffer_load_dword', s.keep[-1], tw, d, tsf, mods='offen')])
        YB = 2 * SLOT
        vW = [s.v(f'vw{r}') for r in range(4)]
        mq2 = s.sreg('mq2', 2)
        cc, c15, ub = s.v(), s.v(), s.sreg('ub')
        a(I('v_cmp_lt_u32', mq2, 1, q))
        a(I('v_lshl_add_u32', cc, q, 7, k1))
        a(I('v_sub_u32', z, 512, cc))
        a(I('v_cndmask_b32', cc, cc, z, mq2))
        a(I('v_and_b32', c15, 15, cc))
        a(I('s_lshl_b32', ub, s.sW, 1))
        a(I('v_xor_b32', c15, ub, c15))
        a(I('v_lshlrev_b32', c15, 4, c15))
        a(I('v_lshl_add_u32', cc, cc, 8, c15))
        a(I('v_add_u32', cc, YB, cc))
        stp, dum = s.v(), s.v()
        a(I('v_mov_b32', z, -8192))
        a(I('v_mov_b32', stp, 8192))
        a(I('v_cndmask_b32', stp, stp, z, mq2))
        a(I('v_add_u32', dum, 4 * SLOT + 16384, s.vL16))
        for r in range(4):
            if r:
                a(I('v_add_u32', cc, cc, stp))
            a(I('v_cndmask_b32', vW[r], cc, dum, m0_))
        a(I('v_lshlrev_b32', x, 7, q))
        a(I('v_add_u32', z, -240, x))
        a(I('v_cndmask_b32', x, x, z, mq2))
        a(I('v_lshlrev_b32', x, 8, x))
        a(I('v_and_b32', z, 7, k1))
        a(I('v_lshl_add_u32', x, z, 2, x))
        a(I('v_and_b32', z, 8, k1))
        a(I('v_lshl_add_u32', x, z, 4, x))
        a(I('s_lshl_b32', t, ub, 4))
        a(I('s_add_u32', t, t, YB))
        a(I('v_add_u32', vCSP, t, x))
        vSPW, vSPR = s.v('spw'), s.v('spr')
        a(I('s_lshl_b32', t, s.sW, 10))
        a(I('s_add_u32', t, t, 4 * SLOT + 20480))
        a(I('v_add_u32', vSPR, t, s.vL16))
        a(I('v_cndmask_b32', vSPW, dum, vSPR, m0_))
        vRd = [s.v('yr'), s.v('yr')]
        vGo, sy = s.v('ygo'), s.sreg('sy')
        a(I('v_lshrrev_b32', y, 3, s.vL))
        a(I('v_xor_b32', x, y, s.vL))
        a(I('v_and_b32', x, 7, x))
        a(I('v_lshlrev_b32', x, 4, x))
        a(I('v_lshl_add_u32', x, y, 8, x))
        a(I('s_add_u32', t, lx, YB))
        a(I('v_add_u32', vRd[0], t, x))
        a(I('v_xor_b32', vRd[1], 128, vRd[0]))
        a(I('v_mul_u32_u24', y, CP, y))
        a(I('v_and_b32', x, 7, s.vL))
        a(I('v_lshl_add_u32', vGo, x, 4, y))
        a(I('s_mul_i32', sy, s.sW, 64 * CP))
        a(I('s_lshr_b32', t, t4, 2))
        a(I('s_lshl_b32', t, t, 11))
        a(I('s_add_u32', sy, sy, t))
        a(I('s_and_b32', t, t4, 3))
        a(I('s_lshl_b32', t, t, 8))
        a(I('s_add_u32', sy, sy, t))
        a(I('s_lshl_b32', t, bh, 7))
        a(I('s_add_u32', sy, sy, t))
        fo = s.sreg('fy')
        a(I('s_lshl_b32', fo, s.sW, 5))
        a(I('s_add_u32', fo, fo, hid))
        a(I('s_lshl_b32', fo, fo, 2))
        a(I('s_add_u32', fo, fo, FY))
        o += flat(s.stamp(1))
        a(WAIT(s.ldE))
        s.keep.append(td)
        o += tg
        a(WAIT(*xd))
        o += flat(s.stamp(2))
        it = []
        DS, DQ = s.v('dsum', 4), s.v('dsq', 4)
        for ks in range(16):
            f = s.v('xf', 4)
            it.append(I('ds_read_b128', f, vS[ks & 3], mods=f'offset:{(ks >> 2) * 256}'))
            it.append(I('v_mfma_f32_16x16x32_bf16', DS, f, ONE, DS if ks else 0))
            it.append(I('v_mfma_f32_16x16x32_bf16', DQ, f, f, DQ if ks else 0))
        mk = [s.sreg('mk', 2) for _ in range(3)]
        l3 = s.v()
        it.append(I('v_and_b32', l3, 3, s.vL))
        for k in range(3):
            it.append(I('v_cmp_eq_u32', mk[k], k + 1, l3))
        sm, sq = s.v(), s.v()
        it.append(I('v_cndmask_b32', sm, DS[0], DS[1], mk[0]))
        it.append(I('v_cndmask_b32', sq, DQ[0], DQ[1], mk[0]))
        for k in (1, 2):
            it.append(I('v_cndmask_b32', sm, sm, DS[k + 1], mk[k]))
            it.append(I('v_cndmask_b32', sq, sq, DQ[k + 1], mk[k]))
        GR = s.v('gr', 4)
        vR, nm, var, hi = s.v('vr'), s.v(), s.v(), s.v()
        it.append(I('v_mul_f32', nm, lit(-1 / 512), sm))
        it.append(I('v_mul_f32', var, lit(1 / 512), sq))
        it.append(I('v_fma_f32', var, neg(nm), nm, var))
        it.append(I('v_max_f32', var, 0, var))
        it.append(I('v_add_f32', var, lit(1e-5), var))
        it.append(I('v_rsq_f32', vR, var))
        it.append(I('v_sqrt_f32', GR[2], var))
        it.append(I('v_mul_f32', GR[1], lit(-LOG2E), vR))
        it.append(I('v_cvt_pk_bf16_f32', hi, nm, nm))
        it.append(I('v_and_b32', hi, 0xffff0000, hi))
        lo = s.v()
        it.append(I('v_sub_f32', lo, nm, hi))
        it.append(I('v_cvt_pk_bf16_f32', GR[0], hi, lo))
        it.append(I('v_mov_b32', GR[3], s.sTAG))
        va, dg, so = s.v(), s.v(), s.sreg()
        it.append(I('v_bfe_u32', dg, s.vL, 2, 2))
        d3 = s.v()
        it.append(I('v_and_b32', d3, 2, dg))
        it.append(I('v_add_u32', d3, d3, dg))
        it.append(I('v_lshl_add_u32', va, l3, 5, d3))
        it.append(I('v_lshlrev_b32', va, 4, va))
        it.append(I('v_xor_b32', dg, dg, q))
        it.append(I('v_min_u32', dg, 1, dg))
        it.append(I('v_lshl_add_u32', va, dg, 30, va))
        it.append(I('s_lshl_b32', so, rb, 4))
        it.append(I('s_add_u32', so, so, STATS))
        it.append(I('buffer_store_dwordx4', GR, va, s.dWS, so, mods='offen sc1'))
        sR = [s.sreg(f'r{k}', 2) for k in range(8)]
        for rho in range(16):
            it.append(I('v_readlane_b32', sR[rho >> 1][rho & 1], vR, 20 * (rho >> 2) + (rho & 3)))
        sc, tt = listsched(it)
        print('helper stats model cycles', tt, file=sys.stderr)
        o += sc
        o += flat(s.stamp(3))
        o += vm_first
        yst = []

        def publish(hf):
            out = []
            for e in range(8):
                d, so = s.v('yb', 4), s.sreg()
                rd = I('ds_read_b128', d, vRd[(hf ^ e) & 1], mods=f'offset:{e * 2048}')
                rd.region = 'yr'
                st_ = I('buffer_store_dwordx4', d, vGo, s.dWS, so, mods='offen sc1')
                yst.append(st_)
                out.append([rd, I('s_add_u32', so, sy, YT + e * 8 * CP + hf * 1024), st_])
            return out
        halves = []
        for hf in range(2):
            it = []
            ywr = []
            for bb in (2 * hf, 2 * hf + 1):
                OUT = [s.v('yo', 4) for r in range(4)]
                for i in range(4):
                    rho = 4 * bb + i
                    ad, X = s.v(), s.v('xa', 4)
                    DR, DI, E1, E2, PB = s.v('dr', 4), s.v('di', 4), s.v('e1', 4), s.v('e2', 4), s.v('pb', 4)
                    it.append(I('v_xor_b32', ad, rho * 16, vT))
                    it.append(I('ds_read_b64_tr_b16', X[0:2], ad, mods=f'offset:{rho * 1024}'))
                    it.append(I('ds_read_b64_tr_b16', X[2:4], ad, mods=f'offset:{rho * 1024 + 512}'))
                    it.append(I('v_mfma_f32_16x16x32_bf16', DR, X, BC, 0))
                    it.append(I('v_mfma_f32_16x16x32_bf16', DI, X, BS, 0))
                    sel = 'op_sel:[0,1] op_sel_hi:[1,1]' if rho & 1 else 'op_sel_hi:[1,0]'
                    for p_ in (0, 2):
                        c, sn, tr_, ti_ = s.v('c', 2), s.v('c', 2), s.v('c', 2), s.v('c', 2)
                        it.append(I('v_pk_mul_f32', c, TC[p_:p_ + 2], sR[rho >> 1], mods=sel))
                        it.append(I('v_pk_mul_f32', sn, TS[p_:p_ + 2], sR[rho >> 1], mods=sel))
                        it.append(I('v_pk_mul_f32', tr_, DR[p_:p_ + 2], c))
                        it.append(I('v_pk_mul_f32', ti_, DI[p_:p_ + 2], c))
                        it.append(I('v_pk_fma_f32', tr_, DI[p_:p_ + 2], sn, tr_))
                        it.append(I('v_pk_fma_f32', ti_, DR[p_:p_ + 2], sn, ti_, mods='neg_lo:[1,0,0] neg_hi:[1,0,0]'))
                        for e in range(2):
                            it.append(I('v_cvt_pk_bf16_f32', PB[p_ + e], tr_[e], ti_[e]))
                    it.append(I('v_mfma_f32_16x16x32_bf16', E1, ARE, PB, 0))
                    it.append(I('v_mfma_f32_16x16x32_bf16', E2, AIM, PB, 0))
                    w_ = I('ds_write_b128', vSPW, PB, mods=f'offset:{rho * 16}')
                    w_.region = 'sp'
                    it.append(w_)
                    for r in range(4):
                        it.append(I('v_cvt_pk_bf16_f32', OUT[r][i], E1[r], E2[r]))
                for r in range(4):
                    ad = s.v()
                    if bb:
                        it.append(I('v_xor_b32', ad, (bb >> 1) * 128 + (bb & 1) * 16, vW[r]))
                    else:
                        ad = vW[r]
                    w_ = I('ds_write_b128', ad, OUT[r])
                    w_.region = 'y'
                    ywr.append(w_)
                    it.append(w_)
            SP, E1, E2 = s.v('sp', 4), s.v('e1', 4), s.v('e2', 4)
            r_ = I('ds_read_b128', SP, vSPR)
            r_.region = 'sp'
            it.append(r_)
            it.append(I('v_mfma_f32_16x16x32_bf16', E1, SRE, SP, 0))
            it.append(I('v_mfma_f32_16x16x32_bf16', E2, SIM, SP, 0))
            for r in range(4):
                pk = s.v()
                it.append(I('v_cvt_pk_bf16_f32', pk, E1[r], E2[r]))
                w_ = I('ds_write_b32', vCSP, pk, mods=f'offset:{r * 8192}')
                w_.region = 'y'
                ywr.append(w_)
                it.append(w_)
            halves.append((it, ywr))
        it = halves[0][0]
        post = []
        for n, g in enumerate(pre_vm):
            if P.touch_at[n] == -1:
                post += g
                s.keep.remove(g[-1].ops[0].r)
            elif P.touch_at[n] is not None:
                it.insert(P.touch_at[n], g)
            else:
                it.insert(0, I('comment', 'no touch', extra_def=[g[-1].ops[0]]))
        it.append([WAIT(*halves[0][1]), I('s_barrier')])
        it2 = halves[1][0]
        for n, g in enumerate(publish(0)):
            k = 6 + n * P.pub_step
            it2[k:k] = g
        sc, tt = listsched(it + it2 + nC, inorder=P.fft_win)
        print('helper fft model cycles', tt, file=sys.stderr)
        o += sc
        a(WAIT(*halves[1][1], wdma))
        a(I('s_barrier'))
        o += flat(s.stamp(4))
        sc, _ = listsched(flat(publish(1)), inorder=40)
        o += sc
        o += flat(s.stamp(5))
        o += wC0 + wC + wst
        o += s.own_xor() + flat(s.tail_setup())
        o += [WAIT(*yst), I('comment', 'prefetches landed', extra_use=s.keep), s.flag_store(fo)] + wF
        o += post
        o += flat(s.stamp(6))
        a(I('s_barrier'))
        c1 = s.lane_floats() + s.consts_p2() + s.wd_init()
        gs = []
        for jp in range(7):
            gs += s.wd_dma(jp)
        per = len(c1) // len(gs)
        for n, g in enumerate(gs):
            o += g + c1[n * per:(n + 1) * per]
        o += c1[len(gs) * per:]
        pa, pb, pa2, pb2 = s.yw_poll()
        ea, eb = s.hflag_poll(FE)
        o += flat(pa) + flat(pa2)
        for j in range(10):
            o += flat(s.wd_read(j))
        o += flat(pb) + flat(pb2)
        a(I('comment', 'landed', extra_use=[x_.ops[0] for x_ in post if x_.kind == 'vld']))
        o += flat(s.stamp(7))
        o += s.tail([], [[x] for x in ea] + eb, [], True)
        return o

    def windowed(s, items, win):
        out = []
        tot = 0
        k = 0
        n = len(items)
        while k < n:
            sc, t = listsched(items[k:k + win])
            out += sc
            tot += t
            k += win
        print('windowed model cycles', tot, file=sys.stderr)
        return out

    def tail(s, extra, echeck, late, helper=False):
        nh_p2 = 0 if helper else P.nh_p2
        o = []
        a = o.append
        flat = lambda gs: [i for g in gs for i in (g if isinstance(g, list) else [g])]
        if P.stop <= 1:
            o += flat([e[0] for e in extra]) + late + flat(echeck)
            return o + s.finish()
        s.sHB2 = s.sreg('hb2')
        it = []
        it.append(([WAIT(s.ytok), I('s_barrier')], 0, 6000))
        vYA = s.v('ya')
        it.append(I('v_add_u32', vYA, s.wd_unit(7), s.vL16))
        s.Y = [[None] * 4 for _ in range(2)]
        for tb in range(2):
            for ks in range(4):
                s.Y[tb][ks] = s.v('y', 4, 'any')
                it.append(I('ds_read_b128', s.Y[tb][ks], vYA, mods=f'offset:{ks * 8192 + tb * 1024}'))
        vq = []
        for jp in range(14):
            if jp not in s.wdtok and jp != 7 and (jp < 9 or 2 * (jp - 9) + 1 in s.wdrd):
                for x in s.wd_dma(jp):
                    vq.append(x)
        tt = 0
        nvm = 0
        hl = [s.h_load(0, j) for j in range(nh_p2)]
        seq = vq + ([] if helper else echeck) + hl
        for x in seq:
            isvm = any(i.kind in ('dma', 'vld') for i in x)
            it.append((x, max(0, tt - (0 if isvm else 40)), 4000))
            if isvm:
                tt += P.h_dt
                nvm += 1
                if nvm == P.extra_at:
                    it += extra
        if nvm < P.extra_at:
            it += extra
        M = 'v_mfma_f32_16x16x32_bf16'
        D1 = [[s.v('d1', 4), s.v('d1', 4)] for _ in range(2)]
        for tb in range(2):
            for ks in range(4):
                it.append(I(M, D1[tb][0], s.Y[tb][ks], s.C1A[ks], D1[tb][0] if ks else 0))
                it.append(I(M, D1[tb][1], s.Y[tb][ks], s.C1B[ks], D1[tb][1] if ks else 0))
        WR = [[s.v('wr') for _ in range(4)] for _ in range(2)]
        for m in range(2):
            for r in range(4):
                it.append(I('v_lshlrev_b32', WR[m][r], 16, s.WF[m][r]))
                it.append(I('v_and_b32', s.WF[m][r], 0xffff0000, s.WF[m][r]))

        def cmul(dr, di, c, sn, conj):
            x, y = s.v(), s.v()
            g = [I('v_mul_f32', x, dr, c), I('v_mul_f32', y, di, c)]
            if conj:
                g += [I('v_fmac_f32', x, di, sn), I('v_fma_f32', y, neg(dr), sn, y)]
            else:
                g += [I('v_fma_f32', x, neg(di), sn, x), I('v_fmac_f32', y, dr, sn)]
            return g, x, y
        PP, QQ = [s.v('p', 4) for _ in range(2)], [s.v('q', 4) for _ in range(2)]
        for tb in range(2):
            for r in range(4):
                g, x, y = cmul(D1[tb][0][r], D1[tb][1][r], *s.T1[tb][r], True)
                it += g
                it.append(I('v_cvt_pk_bf16_f32', PP[tb][r], x, y))
                it.append(I('v_cvt_pk_bf16_f32', QQ[tb][r], y, neg(x)))
        D2 = [[s.v('d2', 4), s.v('d2', 4)] for _ in range(2)]
        for tb in range(2):
            for m in range(2):
                it.append(I(M, D2[m][0], s.C2[m][tb], PP[tb], D2[m][0] if tb else 0))
                it.append(I(M, D2[m][1], s.C2[m][tb], QQ[tb], D2[m][1] if tb else 0))
        PP, QQ = [s.v('p', 4) for _ in range(2)], [s.v('q', 4) for _ in range(2)]
        for m in range(2):
            for r in range(4):
                g, x, y = cmul(D2[m][0][r], D2[m][1][r], WR[m][r], s.WF[m][r], False)
                it += g
                it.append(I('v_cvt_pk_bf16_f32', PP[m][r], x, neg(y)))
                it.append(I('v_cvt_pk_bf16_f32', QQ[m][r], y, x))
        D3 = [[s.v('d3', 4), s.v('d3', 4)] for _ in range(2)]
        for m in range(2):
            for n in range(2):
                it.append(I(M, D3[n][0], PP[m], s.C2[n][m], D3[n][0] if m else 0))
                it.append(I(M, D3[n][1], QQ[m], s.C2[n][m], D3[n][1] if m else 0))
        XB = 3 * SLOT + 4096
        vXW, vXR = s.v('xw'), s.v('xr')
        t = s.sreg()
        it.append(I('s_add_u32', t, s.sLW, XB))
        it.append(I('v_add_u32', vXW, t, s.vL16))
        it.append(I('v_add_u32', vXR, XB, s.vL16))
        ws = []
        for n in range(2):
            U = s.v('u', 4)
            for r in range(4):
                g, x, y = cmul(D3[n][0][r], D3[n][1][r], *s.T3[n][r], False)
                it += g
                it.append(I('v_cvt_pk_bf16_f32', U[r], x, neg(y)))
            w_ = I('ds_write_b128', vXW, U, mods=f'offset:{n * 1024}')
            ws.append(w_)
            it.append(w_)
        it.append([WAIT(*ws), I('s_barrier')])
        it += [(x, 0, 4000) for x in s.wd_dma(7)]
        D4 = [[s.v('d4', 4), s.v('d4', 4)] for _ in range(2)]
        for ks in range(4):
            for n in range(2):
                U = s.v('ux', 4)
                it.append(I('ds_read_b128', U, vXR, mods=f'offset:{ks * 8192 + n * 1024}'))
                it.append(I(M, D4[n][0], U, s.C1A[ks], D4[n][0] if ks else 0))
                it.append(I(M, D4[n][1], U, s.C1B[ks], D4[n][1] if ks else 0))
        vZ, x, y = s.v('vz'), s.v(), s.v()
        it.append(I('v_and_b32', x, 15, s.vL))
        it.append(I('v_lshrrev_b32', y, 4, s.vL))
        it.append(I('v_lshlrev_b32', y, 4, y))
        it.append(I('v_lshl_add_u32', vZ, x, 6, y))
        zs, w1k = s.sreg(), s.sreg('w1k')
        it.append(I('s_lshl_b32', w1k, s.sW, 10))
        it.append(I('s_mul_i32', zs, s.WG, 2 * ZP))
        it.append(I('s_add_u32', zs, zs, w1k))
        zst = []
        for part in range(2):
            Z, so = s.v('z', 4), s.sreg()
            for n in range(2):
                for e in range(2):
                    it.append(I('v_cvt_pk_bf16_f32', Z[2 * n + e], D4[n][part][2 * e], D4[n][part][2 * e + 1]))
            it.append(I('s_add_u32', so, zs, ZT + part * ZP))
            st = I('buffer_store_dwordx4', Z, vZ, s.dWS, so, mods='offen sc1')
            zst.append(st)
            it.append(st)
        WD = s.WD
        sc, tt = listsched(it)
        print('P2 model cycles', tt, file=sys.stderr)
        if late:
            pos = min(len(sc), P.lflag // 4)
            while sc[pos - 1].op in ('v_cmp_ne_u32', 's_add_u32', 's_cbranch_vccnz', 'wait') or sc[pos].op in ('label',):
                pos += 1
            sc = sc[:pos] + late + sc[pos:]
        o += s.abl(3, sc)
        o += flat(s.stamp(8))
        zf = s.sreg()
        zflag = [I('s_lshl_b32', zf, s.WG, 2), I('s_add_u32', zf, zf, w1k), I('s_add_u32', zf, zf, FZ)]
        if P.stop <= 2:
            o += zflag + [WAIT(*zst), s.flag_store(zf)]
            return o + s.finish()
        M32 = 'v_mfma_f32_32x32x16_bf16'
        for j in range(2):
            if (j, 0) not in WD:
                o += flat(s.wd_read(j))
        OA = [[s.v(f'oa{sq}0', 16), s.v(f'oa{sq}1', 16, 'any')] for sq in range(2)]
        SA = [[s.v(f'sa{sq}0', 16), s.v(f'sa{sq}1', 16, 'any')] for sq in range(2)]
        qr, qv, qm, qx, qf = Queue('rd'), Queue('vm'), Queue('misc'), Queue('x'), Queue('finv')
        vm = []
        la, lb = s.hflag_poll(FL)
        hb2 = I('s_add_u32', s.sHB2, s.sHB, 112 * 1024)
        if helper:
            o += flat(echeck)
            for j in range(10):
                o += s.h_load(0, j)
            nh_p2 = 10
        for j in range(nh_p2, 28):
            vm.append((2 * j - P.h_lead, 0, [s.h_load(0, j)]))
        beats = []
        for j in range(28):
            for nq in range(2):
                beats.append([I(M32, OA[0][nq], WD[(j, nq)], s.hfrag[(0, j)], OA[0][nq] if j else 0)])
            if j + 2 < 28 and (j + 2, 0) not in WD:
                for n, g in enumerate(s.wd_read(j + 2)):
                    qr.add(g, 2 * j, 2 * j + (n > 2))
            p_ = (j >> 1) + 9
            if (j & 1) and p_ < 14 and p_ not in s.wdtok:
                vm.append((4 * p_ - 4 - P.w_lead, 2 * j + 1, s.wd_dma(p_)))
        beats[55] = beats[55] + flat(s.stamp(9))
        poll_z, chk_z, poll_l, chk_l = P.poll_z, P.chk_z, P.poll_l, P.chk_l
        X = P.p3_after
        B3 = 56 + 2 * X
        B4 = B3 + 32
        qm.addeach(zflag + [hb2], 0, 4)
        vm.append((poll_l, poll_l - 2, [[x] for x in la]))
        vm.append((P.zflag, P.zflag, [[WAIT(*zst), s.flag_store(zf)]]))
        vm.append((chk_l, chk_l, lb))
        for j in range(28):
            dl = 56 + 2 * j - P.h_lead if j < X else B3 + P.hl_late + 2 * (j - X)
            vm.append((max(chk_l + 1, dl), chk_l, [s.h_load(1, j)]))
        late_beats = []
        for j in range(28):
            for nq in range(2):
                late_beats.append([I(M32, OA[1][nq], WD[(j, nq)], s.hfrag[(1, j)], OA[1][nq] if j else 0)])
        beats += late_beats[:2 * X]
        beats[-1] = beats[-1] + flat(s.stamp(10))
        vXO, vXI = [s.v('xo'), s.v('xo')], [[None] + [s.v('xi') for _ in range(3)] for _ in range(2)]
        sKS = s.sreg('ksc')
        setup = [I('v_add_u32', vXO[0], s.sLW, s.vL16), I('v_add_u32', vXO[0], 65536, vXO[0]), I('v_add_u32', vXO[1], 65536, vXO[0])]
        for k in range(2):
            for v_ in range(1, 4):
                setup.append(I('v_xor_b32', vXI[k][v_], v_ * 8192, vXO[k]))
        setup.append(I('s_mov_b32', sKS, lit(float(2048 * 512 // 2))))
        qm.addeach(setup, 40, 56)

        def exchange(accs, slot):
            k_, box = (0, (slot - 2) * SLOT) if slot < 4 else (1, 0)
            wr, rd, inn = [], [], []
            for v_ in range(1, 4):
                src = accs[v_ & 1]
                for e in range(2):
                    k = 8 * (v_ >> 1) + 4 * e
                    wr.append(I('ds_write_b128', vXO[k_], src[k:k + 4], mods=f'offset:{box + (v_ - 1) * 2048 + e * 1024}'))
            for v_ in range(1, 4):
                for e in range(2):
                    d = s.v('xin', 4)
                    rd.append(I('ds_read_b128', d, vXI[k_][v_], mods=f'offset:{box + (v_ - 1) * 2048 + e * 1024}'))
                    inn.append((e, d))
            return wr, [WAIT(*wr), I('s_barrier')], rd, inn

        def addup(acc, inn):
            return [I('v_add_f32', acc[4 * e + k], acc[4 * e + k], d[k]) for e, d in inn for k in range(4)]

        def silu(acc):
            g = []
            T = s.v('sg', 8)
            for p in range(0, 8, 2):
                for k in (p, p + 1):
                    g.append(I('v_mul_f32', T[k], lit(-LOG2E), acc[k]))
                for k in (p, p + 1):
                    g.append(I('v_exp_f32', T[k], T[k]))
                for k in (p, p + 1):
                    g.append(I('v_fma_f32', T[k], T[k], sKS, sKS))
                for k in (p, p + 1):
                    g.append(I('v_rcp_f32', T[k], T[k]))
                for k in (p, p + 1):
                    g.append(I('v_mul_f32', T[k], T[k], acc[k]))
            return g, T
        xs, t = s.sreg('xs'), s.sreg()
        vXD, x1, x2 = [s.v('xd'), s.v('xd')], s.v(), s.v()
        xa = [I('v_lshrrev_b32', x1, 3, s.vL), I('v_xor_b32', x2, x1, s.vL), I('v_and_b32', x2, 7, x2), I('v_lshlrev_b32', x2, 4, x2),
              I('v_lshl_add_u32', vXD[0], x1, 10, x2), I('v_add_u32', vXD[1], 7168, vXD[0]),
              I('s_lshl_b32', xs, s.sSB, 16), I('s_add_u32', xs, xs, s.sCT128),
              I('s_lshl_b32', t, s.sW, 14), I('s_add_u32', t, t, xs)]
        xd = [I('buffer_load_dwordx4', vXD[k], s.dX, t, mods=f'offen offset:{k * 1024} lds') for k in range(2)]
        vm.append((P.x_at, P.x_at - 4, [[x] for x in xa] + [sum(dma_group(I('s_add_u32', 'm0', s.sLW, 3 * SLOT + 6144), xd), [])]))
        wr, bar, rd, inn = exchange(OA[0], 2)
        for n, x in enumerate(wr):
            qx.add(x, 59 + 2 * n, 60 + 2 * n)
        qx.add([WAIT(xd[1])] + bar, 72, 73)
        qx.addeach(rd, 73, 76)
        vXR, XV, XF = [s.v('xr'), s.v('xr')], [[s.v('xv', 2), s.v('xv', 2)] for _ in range(2)], [s.v('xf', 8), s.v('xf', 8)]
        y1, y2, y3, t3 = s.v(), s.v(), s.v(), s.sreg()
        xr = [I('v_bfe_u32', y1, s.vL, 4, 1), I('v_lshlrev_b32', y1, 13, y1), I('v_and_b32', y2, 15, s.vL), I('v_lshl_add_u32', y1, y2, 7, y1),
              I('s_lshr_b32', t3, s.sOWN, 3), I('v_and_b32', y2, 7, s.vL), I('v_xor_b32', y2, t3, y2), I('v_lshl_add_u32', y1, y2, 4, y1),
              I('v_lshrrev_b32', y3, 5, s.vL), I('v_lshl_add_u32', y1, y3, 3, y1), I('v_add_u32', vXR[0], 3 * SLOT + 6144, y1),
              I('v_xor_b32', vXR[1], 16, vXR[0])]
        qm.addeach(xr, 44, 70)
        for k in range(2):
            for e in range(2):
                qx.add(I('ds_read_b64', XV[k][e], vXR[e], mods=f'offset:{k * 16384}'), 74, 78)
        qx.addeach(addup(OA[0][0], inn), 77, 95)
        g, G0 = silu(OA[0][0])
        qx.addeach(g, 78, B3 + 17)
        for k in range(2):
            for e in range(4):
                qx.add(I('v_lshlrev_b32', XF[k][2 * e], 16, XV[k][e >> 1][e & 1]), 80, B3 + 17)
                qx.add(I('v_and_b32', XF[k][2 * e + 1], 0xffff0000, XV[k][e >> 1][e & 1]), 80, B3 + 17)
        zp, zo, t4 = s.sreg(), s.sreg(), s.sreg()
        zv = s.v()
        za = [I('s_lshr_b32', zp, s.sSB, 3), I('s_lshl_b32', zp, zp, 3), I('s_add_u32', zp, zp, s.sW), I('s_lshl_b32', zp, zp, 7),
              I('s_add_u32', zp, zp, FZ), I('v_and_b32', zv, 128, s.vL4), I('v_mul_u32_u24', zv, 3, zv), I('v_add_u32', zv, zv, s.vL4)]
        dz, lz = s.poll_issue(zv, zp)
        vm.append((poll_z, poll_z - 2, [[x] for x in za + [lz]]))
        vZD = [s.v('zd') for _ in range(4)]
        y = s.v()
        zb = [I('v_lshrrev_b32', y, 3, s.vL), I('v_mul_u32_u24', y, ZP, y), I('v_add_u32', vZD[0], y, s.vSW)]
        zb += [I('v_add_u32', vZD[i], i * (8 * ZP - 1024), vZD[0]) for i in range(1, 4)]
        zb += [I('s_mul_i32', zo, s.sW, 64 * ZP), I('s_lshl_b32', t4, s.sSB, 7), I('s_add_u32', zo, zo, t4)]
        tb_, vZA = s.tr_addr(False)
        vOO, o1, o2 = s.v('ooff'), s.v(), s.v()
        XS = [s.sreg('os'), s.sreg('os')]
        oa = [I('v_and_b32', o1, 31, s.vL), I('v_lshrrev_b32', o2, 5, s.vL), I('v_lshlrev_b32', o2, 4, o2), I('v_lshl_add_u32', vOO, o1, 10, o2),
              I('s_lshl_b32', XS[0], s.sOWN, 1), I('s_add_u32', XS[0], XS[0], xs), I('s_add_u32', XS[1], XS[0], 32768)]
        qm.addeach(zb + tb_, 48, chk_z - 1)
        qm.addeach(oa, max(P.x_at + 1, 48), 110)
        vm.append((chk_z, chk_z, [s.poll_check(dz, lz, 60) + s.fine(47)]))
        ztok = []
        for g_ in range(4):
            so = s.sreg()
            d = [I('buffer_load_dwordx4', vZD[i], s.dWS, so, mods=f'offen offset:{i * 1024} sc1 lds') for i in range(4)]
            vm.append((max(chk_z + 1, B3 - 4 + 4 * g_ - P.z_lead), chk_z,
                       [[I('s_add_u32', so, zo, ZT + ((g_ & 1) * 32 + (g_ >> 1) * 256) * ZP)]] + dma_group(I('s_add_u32', 'm0', s.sLW, (g_ >> 1) * SLOT + (g_ & 1) * 4096), d)))
            ztok.append(d[-1])
        ZF = {}
        for j in range(8):
            for sq in range(2):
                d = s.v('zf', 4, 'any')
                ZF[(sq, j)] = d
                off = (j >> 2) * SLOT + (j & 3) * 2048
                bt = B3 + 2 * j - 4
                if sq == 0 and (j & 1) == 0:
                    qr.add([WAIT(ztok[j >> 1])], bt, bt)
                for e in range(2):
                    qr.add(I('ds_read_b64_tr_b16', d[2 * e:2 * e + 2], vZA[sq], mods=f'offset:{off + e * 1024}'), bt, bt + sq)
        cf = s.consts_finv()
        for n, x in enumerate(cf):
            qf.add(x, 0, B3 - 3)
        for n in range(16):
            sq, j = n >> 3, n & 7
            for nq in range(2):
                beats.append([I(M32, SA[sq][nq], s.FV[nq][j], ZF[(sq, j)], SA[sq][nq] if j else 0)])
        beats[-1] = beats[-1] + flat(s.stamp(11))
        beats += late_beats[2 * X:]

        def out_store(k):
            O = s.v('out', 4)
            g = [I('v_cvt_pk_bf16_f32', O[e], XF[k][2 * e], XF[k][2 * e + 1]) for e in range(4)]
            g += [I('v_permlane32_swap_b32', O[0], O[2]), I('v_permlane32_swap_b32', O[1], O[3])]
            g.append(I('buffer_store_dwordx4', O, vOO, s.dO, XS[k], mods='offen' + P.out_mod))
            return g
        qy = Queue('y')
        wr, bar, rd, inn = exchange(SA[0], 4)
        for n, x in enumerate(wr):
            qx.add(x, B3 + 19 + n, B3 + 19 + n)
        qx.add(bar, B3 + 27, B3 + 27)
        qx.addeach(rd, B3 + 27, B3 + 29)
        qy.addeach([I('v_fmac_f32', XF[0][e], SA[0][0][e], G0[e]) for e in range(8)], B3 + 20)
        qy.addeach([I('v_fmac_f32', XF[0][4 * e + i], d[i], G0[4 * e + i]) for e, d in inn for i in range(4)] + out_store(0), B3 + 31)
        wr, bar, rd, inn = exchange(SA[1], 3)
        for n, x in enumerate(wr):
            qx.add(x, B4 + 2 + n, B4 + 2 + n)
        qx.add(bar, B4 + 10, B4 + 10)
        qx.addeach(rd, B4 + 10, B4 + 12)
        qy.addeach(addup(SA[1][0], inn), B4 + 14)
        vm.sort(key=lambda e: (e[0], e[1]))
        tcur = 0.0
        for dl, rel, gs in vm:
            for g in gs:
                isvm = sum(i.kind in ('dma', 'vld', 'vst') for i in g)
                tcur = max(tcur, rel)
                tb0 = min(int(tcur), max(dl, rel))
                qv.add(g, tb0, tb0 + 1)
                tcur = max(tcur, tb0) if tb0 == int(tcur) else float(tb0)
                tcur += P.vm_dt * isvm
        last = 0
        for it_ in qv.items:
            it_.t0 = max(it_.t0, last)
            it_.t1 = max(it_.t1, it_.t0)
            last = it_.t0
        qm.sort()
        o += s.abl(4, weave(beats, [qv, qr, qx, qm, qy, qf], cap=lambda i: P.cap_e if i < 56 else P.cap))
        assert not qv.items and not qr.items and not qm.items and not qf.items
        o += flat(s.stamp(12))
        it = [x_.insts for q_ in (qx, qy) for x_ in q_.items]
        wr, bar, rd, inn = exchange(OA[1], 2)
        it = [(x, 0, 3000) for x in wr] + it + [(bar, P.fin_bar)] + rd
        A1, T = OA[1][0], s.v('sg', 8)
        sNL = s.sreg('nl', 2)
        it.append(I('s_mov_b32', sNL[0], lit(-LOG2E)))
        it.append(I('s_mov_b32', sNL[1], lit(float(2048 * 512 // 2))))
        for e, d in inn:
            for p in (0, 2):
                it.append(I('v_pk_add_f32', A1[4 * e + p:4 * e + p + 2], A1[4 * e + p:4 * e + p + 2], d[p:p + 2]))
        for p in range(0, 8, 2):
            it.append(I('v_pk_mul_f32', T[p:p + 2], A1[p:p + 2], sNL, mods='op_sel_hi:[1,0]'))
            it += [I('v_exp_f32', T[k], T[k]) for k in (p, p + 1)]
            it.append(I('v_pk_fma_f32', T[p:p + 2], T[p:p + 2], sNL, sNL, mods='op_sel:[0,1,1] op_sel_hi:[1,1,1]'))
            it += [I('v_rcp_f32', T[k], T[k]) for k in (p, p + 1)]
            it.append(I('v_pk_mul_f32', A1[p:p + 2], A1[p:p + 2], SA[1][0][p:p + 2]))
            it.append(I('v_pk_fma_f32', XF[1][p:p + 2], A1[p:p + 2], T[p:p + 2], XF[1][p:p + 2]))
        it += out_store(1)
        sc, tt = listsched(it)
        print('final model cycles', tt, file=sys.stderr)
        o += sc
        eo = s.sreg()
        o += [I('s_or_b32', eo, s.WG, s.sW), I('s_cmp_eq_u32', eo, 0), I('s_cselect_b32', eo, 0, BIG), s.flag_store(eo)]
        return o + s.finish()

    def finish(s):
        o = []
        if P.diag:
            t = s.sreg('rt', 2)
            t2 = s.sreg('rt', 2)
            m, m2 = I('s_memrealtime', t), I('s_memtime', t2)
            so, x = s.sreg(), s.v()
            o += [I('s_waitcnt', mods='vmcnt(0)'), m, m2, WAIT(m, m2), I('v_writelane_b32', s.vST, t[0], 63), I('v_writelane_b32', s.vST, t2[0], 15),
                  I('s_lshl_b32', so, s.WG, 2), I('s_add_u32', so, so, s.sW), I('s_lshl_b32', so, so, 8), I('s_add_u32', so, so, STAMPS),
                  I('v_lshlrev_b32', x, 2, s.vL), I('buffer_store_dword', s.vST, x, s.dWS, so, mods='offen')]
        if P.spin is not None:
            t = s.sreg('rt', 2)
            s.lab += 1
            m = I('s_memrealtime', t)
            o += [I('label', f'L_spin{s.lab}'), m, WAIT(m), I('s_sub_u32', t[0], t[0], s.sSP[0]), I('s_cmp_lt_u32', t[0], 4000), I('s_cbranch_scc1', f'L_spin{s.lab}')]
        if P.spincyc:
            t, t0 = s.sreg('rt', 2), s.sreg('rt', 2)
            s.lab += 1
            m, m0 = I('s_memtime', t), I('s_memtime', t0)
            o += [m0, WAIT(m0), I('label', f'L_spin{s.lab}'), m, WAIT(m), I('s_sub_u32', t[0], t[0], t0[0]), I('s_cmp_lt_u32', t[0], P.spincyc), I('s_cbranch_scc1', f'L_spin{s.lab}')]
        o.append(I('s_endpgm'))
        return o

    def trace(s, body):
        out = []
        TR = [s.v('trace') for _ in range(5)]
        out += [I('v_mov_b32', r, 0) for r in TR]
        n = 0
        names = []
        fin = None
        for k, i in enumerate(body):
            if i.op == 's_endpgm':
                so, x = s.sreg(), s.v()
                out += [I('s_lshl_b32', so, s.WG, 2), I('s_add_u32', so, so, s.sW), I('s_mul_i32', so, so, 1280), I('s_add_u32', so, so, STAMPS + 0x100000),
                        I('v_lshlrev_b32', x, 2, s.vL)]
                out += [I('buffer_store_dword', r, x, s.dWS, so, mods=f'offen offset:{256 * j}') for j, r in enumerate(TR)]
            out.append(i)
            if (i.kind in ('dma', 'vld', 'vst') or i.op in ('s_barrier', 'wait')) and n < 320:
                if i.op == 'wait' and not any(t.kind in ('dma', 'vld', 'vst') for t in i.targets):
                    continue
                t = s.sreg('tr', 2)
                m = I('s_memtime', t)
                nxt = body[k + 1]
                out += [m, WAIT(m), I('v_writelane_b32', TR[n >> 6], t[0], n & 63)]
                d = [o for o in i.ops if isinstance(o, Sub) and o.r.cls == 's' and o.r.n == 4]
                nm = {id(s.dX): 'x', id(s.dWG): 'g', id(s.dWU): 'u', id(s.dWD): 'wd', id(s.dWS): 'ws', id(s.dWR): 'wr', id(s.dWI): 'wi', id(s.dO): 'o'}.get(id(d[0].r), '') if d else ''
                names.append(f'{i.kind if i.kind != "pseudo" and i.kind != "misc" else i.op}:{nm}' + (':' + i.ops[0].r.name if i.kind in ('vld', 'vst') else ''))
                n += 1
        open(P.trace, 'w').write('\n'.join(names))
        return out

    def build(s):
        pro = s.prologue()
        paths = []
        for fn in (s.gemm_path, s.helper_path):
            s.slow = []
            s.role = len(paths)
            body = fn()
            if P.fake16:
                nb, par = [], {}
                for i in body:
                    if i.op == 'v_mfma_f32_32x32x16_bf16':
                        D, A_, B_, C_ = i.ops
                        k = par.get(D.r.id, 0)
                        par[D.r.id] = k ^ 2
                        for qd in ((0, 1, 2, 3) if C_ == 0 else (k, k + 1)):
                            nb.append(I('v_mfma_f32_16x16x32_bf16', D[4 * qd:4 * qd + 4], A_, B_, 0 if C_ == 0 else D[4 * qd:4 * qd + 4]))
                    else:
                        nb.append(i)
                body = nb
            if P.trace and fn == s.gemm_path:
                body = s.trace(body)
            paths.append((body, s.slow))
        shared = {}
        for i in pro:
            for d in i.defs:
                if isinstance(d, Sub) and not d.r.pinned:
                    shared[d.r.id] = d.r
        allocate(pro + [I('comment', 'x', extra_use=list(shared.values()))], s_reserved=list(range(0, 36)) + list(range(96, 100)))
        txt = []
        hv = ha = hs = 0
        for n, (body, slow) in enumerate(paths):
            check_def_before_use(pro + body)
            check_m0(body)
            hi = allocate(pro + body, s_reserved=list(range(0, 36)) + list(range(96, 100)), verbose=True)
            hv, ha, hs = max(hv, hi['v']), max(ha, hi['a']), max(hs, hi['s'])
            full, nops = finalize(pro + body)
            print('path', n, 'instructions', len(full), 'hazard nops', nops, file=sys.stderr)
            if n:
                k = [i.op == 'label' and i.ops[0] == 'L_helper' for i in full].index(True)
                full = full[k:]
            txt.append(text(full))
            for sl in slow:
                txt.append(text(sl))
        hdr = open(__file__.rsplit('/', 1)[0] + '/header.txt').read()
        out = hdr + f'''; @launch grid=(256,1,1) block=(256,1,1) lds=163840
.amdgcn_target "amdgcn-amd-amdhsa--gfx950"
.text
.globl {KNAME}
.p2align 8
.type {KNAME},@function
{KNAME}:
''' + ''.join(txt) + f'''L_end:
  s_endpgm
L_codeend:
.section .rodata,"a"
.p2align 6
.amdhsa_kernel {KNAME}
  .amdhsa_next_free_vgpr 512
  .amdhsa_next_free_sgpr 102
  .amdhsa_accum_offset 256
  .amdhsa_group_segment_fixed_size 0
  .amdhsa_kernarg_size 80
  .amdhsa_user_sgpr_count 2
  .amdhsa_user_sgpr_kernarg_segment_ptr 1
  .amdhsa_system_sgpr_workgroup_id_x 1
.end_amdhsa_kernel
'''
        return out


P.probe = 0
P.probe_arg = 24
P.probe_size = 2097152
P.fine = False
P.abl = []
P.ncode = 3
P.wt_bar = 6
P.wst_at = 12
P.wflag = 44
P.touch_at = (4, 5, None, None, None, None)
P.wdt_bar = 6
P.pub_step = 28
P.rc_mask = 7
P.rq = 0
P.ru_mask = 0
P.yflag_at = 60
P.nstat1 = 5
P.stat2 = 62
P.nmid = 2
P.h_t0 = 60
P.h_dt = 90
P.nh_p2 = 8
P.poll_y = 92
P.chk_y = 114
P.poll_w = 108
P.chk_w = 130
P.n1 = 8
P.n1_at = 300
P.fft_win = 90
P.nopoll = 0
P.wt_early = False
P.fake16 = False
P.cap_e = 9
P.p3_after = 20
P.hl_late = 0
P.wd_pre = 1
P.pre_at = 100
P.pre_span = 24
P.wd_refill = 1
P.refill_at = 127
P.hchk_l = 40
P.hchk_z = 84
P.spincyc = 0
P.spin = None
P.trace = ''
P.cm_xor = 4
P.skip3 = False
P.rx = 7
P.nt_w = ''
P.nt_x = ''
P.nt_s = ''
P.rotmask = 4
P.bunch = True
P.h_lead = 16
P.w_lead = 16
P.z_lead = 20
P.vm_dt = 1.9
P.x_at = 50
P.ol_at = 116
P.fin_bar = 300
P.out_mod = ''
P.extra_at = 6
P.wd_plan = ((), (0, 1), (2, 3, 4), (5, 6))
P.wd_span = (28, 33, 33, 20)
P.epi_dead = (28, 40, 51, 61, 88, 116, 140)
P.nh_ring = 14

if __name__ == '__main__':
    outp = sys.argv[1]
    for kv in sys.argv[2:]:
        k, v = kv.split('=')
        setattr(P, k, eval(v))
    open(outp, 'w').write(Gen().build())
```
